```python
import torch

def _softmax(x, axis=-1):
    return torch.softmax(x, dim=axis)
def _gelu(x):
    return torch.nn.functional.gelu(x, approximate="tanh")
def _silu(x):
    return torch.nn.functional.silu(x)
def _sigmoid(x):
    return torch.sigmoid(x)
def _layernorm(x, axis=-1, eps=1e-5):
    m = x.mean(dim=axis, keepdim=True)
    v = x.var(dim=axis, keepdim=True, unbiased=False)
    return (x - m) / torch.sqrt(v + eps)
def _scatter_add(tgt, idx, src, axis=0):
    return tgt.clone().index_add_(axis, idx, src)
def _segment_sum(src, seg, n):
    out = torch.zeros((n,) + src.shape[1:], dtype=src.dtype)
    return out.index_add_(0, seg, src)
def _pad(x, pw):
    flat = tuple(v for pair in reversed(pw) for v in pair)
    return torch.nn.functional.pad(x, flat)

kernel_name = 'recurrent_scan__sliding_block_cached__dense_activation_relu__decode'

def setup_inputs():

    _w = (lambda a: (lambda t: t.to(torch.bfloat16) if t.is_floating_point() else t)(torch.as_tensor(a)))
    def _A_setup():
        B, Sq, D = 2, 1, 1024
        Hq, Hkv, Sk, Dh = 32, 4, 32768, 128
        assert Hq % Hkv == 0, (Hq, Hkv)
        return {
            "x": _w((lambda *s: torch.randn(*s, dtype=torch.bfloat16) * 0.05)(B, Sq, D)),
            "k_cache": _w((lambda *s: torch.randn(*s, dtype=torch.bfloat16) * 1.6)(B, Hkv, Sk, Dh)),
            "v_cache": _w((lambda *s: torch.randn(*s, dtype=torch.bfloat16) * 0.2)(B, Hkv, Sk, Dh)),
            "wq": _w((lambda *s: torch.randn(*s, dtype=torch.bfloat16) * 1.6)(D, Hq * Dh) * (D ** -0.5)),
            "wo": _w((lambda *s: torch.randn(*s, dtype=torch.bfloat16) * 0.2)(Hq * Dh, D) * ((Hq * Dh) ** -0.5)),
        }
    _A_in = _A_setup()

    def _B_setup():
        B, S, D, Dff = 2, 1, 1024, 3584
        return {
            "x": _w((lambda *s: torch.randn(*s, dtype=torch.bfloat16) * 0.05)(B, S, D)),
            "w1": _w((lambda *s: torch.randn(*s, dtype=torch.bfloat16) * 0.1)(D, Dff)),
            "w2": _w((lambda *s: torch.randn(*s, dtype=torch.bfloat16) * 0.1)(Dff, D)),
        }
    _B_in = _B_setup()

    return {
        "A_x": _A_in["x"],
        "A_k_cache": _A_in["k_cache"],
        "A_v_cache": _A_in["v_cache"],
        "A_wq": _A_in["wq"],
        "A_wo": _A_in["wo"],
        "B_x": _B_in["x"],
        "B_w1": _B_in["w1"],
        "B_w2": _B_in["w2"],
    }

def reference(A_x, A_k_cache, A_v_cache, A_wq, A_wo, B_x, B_w1, B_w2):
    def _A_ref(x, k_cache, v_cache, wq, wo):
        B, Sq, D = x.shape
        Hq, Dh = 32, 128
        Hkv, Sk = k_cache.shape[1], k_cache.shape[2]
        W = min(4096, max(256, Sk // 4))
        rep = Hq // Hkv
        q = (lambda x, *d: x.permute(*d))((x @ wq).reshape(B, Sq, Hq, Dh), 0, 2, 1, 3)
        k = (lambda x, n, axis: torch.repeat_interleave(x, n, dim=axis))(k_cache[:, :, Sk - W:, :], rep, axis=1)
        v = (lambda x, n, axis: torch.repeat_interleave(x, n, dim=axis))(v_cache[:, :, Sk - W:, :], rep, axis=1)
        scores = torch.einsum("bhqd,bhkd->bhqk", q, k) * (Dh ** -0.5)
        p = _softmax(scores, axis=-1)
        o = torch.einsum("bhqk,bhkd->bhqd", p, v)
        return (lambda x, *d: x.permute(*d))(o, 0, 2, 1, 3).reshape(B, Sq, Hq * Dh) @ wo

    def _B_ref(x, w1, w2):
        h = torch.einsum("bsd,df->bsf", x, w1)
        zero = torch.zeros_like(h)
        h = torch.maximum(h, zero)
        return torch.einsum("bsf,fd->bsd", h, w2)

    x = A_x
    xn = _layernorm(x, axis=-1)
    s = _A_ref(xn, A_k_cache, A_v_cache, A_wq, A_wo)
    g = _silu(_B_ref(xn, B_w1, B_w2))
    return x + s * g
```

```python
NAME = "recurrent_scan__sliding_block_cached__dense_activation_relu__decode"
HEADER = """; Kernarg layout for this problem (88 bytes, ptrs only, base s[0:1]):
"""

class Asm:
    def __init__(self):
        self.lines = []
    def __call__(self, s):
        for l in s.strip("\n").split("\n"):
            self.lines.append("    " + l.strip() if not l.strip().endswith(":") else l.strip())
    def label(self, n):
        self.lines.append(n + ":")
    def text(self):
        return "\n".join(self.lines) + "\n"

def wrap_single(body, grid, block, lds, vgpr, sgpr=102, accum=None):
    if accum is None:
        accum = (vgpr + 3) // 4 * 4
    k = NAME + "_kernel"
    return (HEADER + f"; @launch grid=({grid},1,1) block=({block},1,1) lds={lds}\n"
        f""".amdgcn_target "amdgcn-amd-amdhsa--gfx950"
.text
.globl {k}
.p2align 8
.type {k},@function
{k}:
{body}
.section .rodata,"a"
.p2align 6
.amdhsa_kernel {k}
  .amdhsa_next_free_vgpr {vgpr}
  .amdhsa_next_free_sgpr {sgpr}
  .amdhsa_accum_offset {accum}
  .amdhsa_group_segment_fixed_size 0
  .amdhsa_kernarg_size 88
  .amdhsa_user_sgpr_count 2
  .amdhsa_user_sgpr_kernarg_segment_ptr 1
  .amdhsa_system_sgpr_workgroup_id_x 1
.end_amdhsa_kernel
""")
```

```python
import sys
from common import *

SLOT_A = 0
SLOT_B = 32768
SLOT_C = 65536
SLOT_D = 98304
MISC = 131072
XN = MISC
XN_BS = 2048 + 64
OB = XN + 2 * XN_BS
OB_BS = 320
HB = OB + 2 * OB_BS
ZR = HB + 2 * OB_BS
ZR_SZ = 640
WB = ZR + ZR_SZ
FL = WB + 256
F_LANDED = FL
F_TAG = FL + 256
F_FREEA = FL + 512
F_FREEB = FL + 768
F_O0 = FL + 1024
F_O1 = FL + 1280
LDS_TOTAL = FL + 1536

WS_EPOCH = 0
WS_Q = 0x10000
WS_H = 0x40000
WS_O = 0x80000
WS_ML = 0x180000
WS_S = 0x190000
WS_F = 0x1D0000
WS_TS = 0x8000000

TAGMASK = 0xFFF
SPIN_MAX = 200000


def gen(fn, D=24, ts=False, order=("wq", "k", "v", "w1", "wo", "w2")):
    a = Asm()
    uid = [0]

    def L(prefix):
        uid[0] += 1
        return f"L_{prefix}_{uid[0]}"

    NTS = 8

    def stamp(i):
        if ts:
            a(f"s_memrealtime s[{84+2*i}:{85+2*i}]")

    if ts:
        a("s_memrealtime s[84:85]")
        for i in range(1, NTS):
            a(f"s_mov_b64 s[{84+2*i}:{85+2*i}], 0")
    a("s_cmp_ge_u32 s2, 256")
    a("s_cbranch_scc1 L_end")
    a("s_load_dwordx16 s[4:19], s[0:1], 0")
    a("s_load_dwordx4 s[20:23], s[0:1], 64")
    a("s_load_dwordx2 s[24:25], s[0:1], 80")
    a("v_lshrrev_b32 v2, 6, v0")
    a("v_and_b32 v1, 63, v0")
    a("v_readfirstlane_b32 s28, v2")
    a("s_and_b32 s26, s2, 7")
    a("s_lshr_b32 s27, s2, 3")
    assert LDS_TOTAL - ZR <= 384 * 8
    a("v_lshlrev_b32 v3, 3, v0")
    a("v_mov_b32 v4, 0")
    a("v_mov_b32 v5, 0")
    a(f"v_cmp_gt_u32 vcc, {(LDS_TOTAL - ZR)//8}, v0")
    a("s_and_saveexec_b64 s[30:31], vcc")
    a(f"ds_write_b64 v3, v[4:5] offset:{ZR - 65536*2 + 65536*2}" if ZR < 65536 else f"v_add_u32 v3, {ZR}, v3")
    if ZR >= 65536:
        a("ds_write_b64 v3, v[4:5]")
    a("s_mov_b64 exec, s[30:31]")
    a("s_waitcnt lgkmcnt(0)")
    a("s_barrier")
    a("s_cmp_eq_u32 s28, 1")
    a("s_cbranch_scc1 L_P")
    a("s_cmp_eq_u32 s28, 2")
    a("s_cbranch_scc1 L_ATT")
    a("s_cmp_eq_u32 s28, 3")
    a("s_cbranch_scc1 L_OG")
    a("s_cmp_eq_u32 s28, 4")
    a("s_cbranch_scc1 L_OG")
    a("s_cmp_eq_u32 s28, 5")
    a("s_cbranch_scc1 L_W2")

    def lds_wait_ge(flag, val, vtmp="v250", vaddr="v251"):
        lab = L("w")
        done = L("wd")
        a(f"v_mov_b32 {vaddr}, {flag}")
        a("s_mov_b32 s34, 0")
        a.label(lab)
        a(f"ds_read_b32 {vtmp}, {vaddr}")
        a("s_add_u32 s34, s34, 1")
        a("s_waitcnt lgkmcnt(0)")
        a(f"v_readfirstlane_b32 s35, {vtmp}")
        a(f"s_cmp_gt_u32 s34, {SPIN_MAX}")
        a(f"s_cbranch_scc1 {done}")
        a(f"s_cmp_lt_u32 s35, {val}")
        a(f"s_cbranch_scc1 {lab}")
        a.label(done)

    def lds_set(flag, val, vtmp="v250", vaddr="v251"):
        a(f"v_lshlrev_b32 {vaddr}, 2, v1")
        a(f"v_add_u32 {vaddr}, {flag}, {vaddr}")
        a(f"v_mov_b32 {vtmp}, {val}")
        a(f"ds_write_b32 {vaddr}, {vtmp}")

    def get_tag():
        lds_wait_ge(F_TAG, 1)
        a(f"s_and_b32 s29, s35, {TAGMASK}")

    def ts_out():
        if not ts:
            return
        a("s_waitcnt lgkmcnt(0)")
        a(f"s_mul_i32 s30, s2, {6*NTS*8}")
        a(f"s_mul_i32 s31, s28, {NTS*8}")
        a("s_add_u32 s30, s30, s31")
        a("v_mov_b32 v2, s30")
        a(f"s_add_u32 s32, s24, {WS_TS}")
        a("s_addc_u32 s33, s25, 0")
        a("s_mov_b64 exec, 1")
        for j in range(NTS):
            a(f"v_mov_b32 v4, s{84+2*j}")
            a(f"v_mov_b32 v5, s{85+2*j}")
            a(f"global_store_dwordx2 v2, v[4:5], s[32:33] offset:{8*j}")
            a("s_nop 1")

    seglen = {"wq": 32, "k": 32, "v": 32, "w1": 32, "wo": 32, "w2": 28}
    segstart = {}
    n = 0
    for s in order:
        segstart[s] = n
        n += seglen[s]
    NLOADS = n

    a("s_waitcnt lgkmcnt(0)")
    srd = {"k": (64, 6, 0x4000000), "v": (68, 8, 0x4000000), "wq": (72, 10, 0x800000), "wo": (76, 12, 0x800000),
           "w1": (80, 16, 0x700000), "w2": (60, 18, 0x700000)}
    for nme, (r, p, sz) in srd.items():
        a(f"s_mov_b32 s{r}, s{p}")
        a(f"s_and_b32 s{r+1}, s{p+1}, 0xffff")
        a(f"s_mov_b32 s{r+2}, {sz}")
        a(f"s_mov_b32 s{r+3}, 0x20000")
    a("v_bfe_u32 v3, v1, 1, 2")
    a("v_lshrrev_b32 v4, 4, v1")
    a("v_xor_b32 v3, v3, v4")
    a("v_lshlrev_b32 v3, 1, v3")
    a("v_and_b32 v5, 1, v1")
    a("v_or_b32 v3, v3, v5")
    a("v_lshlrev_b32 v3, 4, v3")
    a("v_lshrrev_b32 v5, 3, v1")
    a("v_lshl_add_u32 v10, v5, 13, v3")
    a("v_mul_u32_u24 v6, 7168, v5")
    a("v_add_u32 v11, v6, v3")
    a("v_and_b32 v6, 15, v1")
    for i in range(4):
        a(f"v_add_u32 v7, {4*i}, v4")
        a("v_xor_b32 v7, v7, v6")
        a("v_lshlrev_b32 v7, 4, v7")
        a(f"v_lshl_add_u32 v{12+i}, v4, 8, v7")
    for i in range(2):
        a(f"v_add_u32 v7, {4*i}, v4")
        a("v_lshlrev_b32 v7, 1, v7")
        a("v_xor_b32 v7, v7, v6")
        a("v_lshlrev_b32 v7, 4, v7")
        a(f"v_lshl_add_u32 v{16+i}, v4, 8, v7")
        a(f"v_lshl_add_u32 v{18+i}, v4, 11, v7")
    a("s_and_b32 s36, s27, 3")
    a("s_lshr_b32 s37, s27, 2")
    a("s_lshl_b32 s40, s36, 21")
    a("s_lshl_b32 s38, s26, 3")
    a("s_add_u32 s38, s38, s37")
    a("s_lshl_b32 s38, s38, 7")
    a("s_add_u32 s40, s40, s38")
    a(f"s_mul_i32 s41, s36, {256*7168}")
    a("s_mul_i32 s38, s26, 7")
    a("s_add_u32 s38, s38, s37")
    a("s_lshl_b32 s38, s38, 7")
    a("s_add_u32 s41, s41, s38")
    a("s_lshl_b32 s42, s26, 23")
    a("s_lshl_b32 s38, s27, 15")
    a("s_add_u32 s42, s42, s38")
    a("s_add_u32 s42, s42, 0x700000")
    a("s_lshl_b32 s43, s27, 18")
    a("s_lshl_b32 s38, s26, 8")
    a("s_add_u32 s43, s43, s38")
    a(f"s_mul_i32 s44, s27, {112*2048}")
    a("s_add_u32 s44, s44, s38")
    a("v_lshlrev_b32 v20, 2, v1")
    a(f"v_add_u32 v20, {F_LANDED}, v20")
    a("s_cmp_ge_u32 s27, 28")
    a("s_cselect_b32 s82, 0, s82")

    seginfo = {
        "wq": ("s40", lambda i: "v10", 8 * 8192, SLOT_A),
        "w1": ("s41", lambda i: "v11", 8 * 7168, SLOT_A),
        "k": ("s42", lambda i: f"v{12 + (i & 3)}", 1024, SLOT_B),
        "v": ("s42", lambda i: f"v{16 + (i & 1)}", 1024, SLOT_C),
        "wo": ("s43", lambda i: f"v{18 + (i & 1)}", 4 * 2048, SLOT_D),
        "w2": ("s44", lambda i: f"v{18 + (i & 1)}", 4 * 2048, SLOT_B),
    }
    cnt = 0
    GR = 4
    for s in order:
        base, vo, step, slot = seginfo[s]
        r = srd[s][0]
        if s == "w1":
            lds_wait_ge(F_FREEA, 1, "v22", "v23")
        if s == "w2":
            lds_wait_ge(F_FREEB, 1, "v22", "v23")
        for i in range(seglen[s]):
            if cnt >= D and (cnt - D) % GR == 0:
                a(f"s_waitcnt vmcnt({D - GR})")
                a(f"v_mov_b32 v21, {cnt - (D - GR)}")
                a("ds_write_b32 v20, v21")
            a(f"s_mov_b32 m0, {slot + i*1024}")
            a(f"s_add_u32 s45, {base}, {i*step}")
            a(f"buffer_load_dwordx4 {vo(i)}, s[{r}:{r+3}], s45 offen nt lds")
            cnt += 1
    stamp(1)
    k = D - GR
    while k >= 0:
        a(f"s_waitcnt vmcnt({k})")
        a(f"v_mov_b32 v21, {NLOADS - k}")
        a("ds_write_b32 v20, v21")
        k -= GR
    stamp(2)
    ts_out()
    a("s_endpgm")

    a.label("L_P")
    a("s_waitcnt lgkmcnt(0)")
    a("v_lshlrev_b32 v3, 5, v1")
    a("global_load_dwordx4 v[8:11], v3, s[4:5]")
    a("global_load_dwordx4 v[12:15], v3, s[4:5] offset:16")
    a("global_load_dwordx4 v[16:19], v3, s[4:5] offset:2048")
    a("global_load_dwordx4 v[20:23], v3, s[4:5] offset:2064")
    a(f"s_load_dword s36, s[24:25], {WS_EPOCH}")
    a("v_and_b32 v4, 1, v1")
    a("v_lshlrev_b32 v4, 11, v4")
    a("v_bfe_u32 v5, v1, 1, 2")
    a("v_lshl_add_u32 v4, v5, 1, v4")
    a("s_lshl_b32 s30, s26, 8")
    a("s_lshl_b32 s31, s27, 3")
    a("s_add_u32 s30, s30, s31")
    a("v_add_u32 v240, s30, v4")
    a("global_load_ushort v241, v240, s[4:5]")
    a("s_waitcnt lgkmcnt(0)")
    a("s_mul_i32 s37, s36, 1664525")
    a("s_add_u32 s37, s37, 1013904223")
    a(f"s_and_b32 s29, s37, {TAGMASK}")
    a("s_or_b32 s30, s29, 0x1000")
    lds_set(F_TAG, "s30")
    a("s_waitcnt vmcnt(1)")
    for b in range(2):
        for i in range(8):
            src = 8 + 8 * b + i
            a(f"v_lshlrev_b32 v{32+16*b+2*i}, 16, v{src}")
            a(f"v_and_b32 v{33+16*b+2*i}, 0xffff0000, v{src}")

    def wave_sum2(r0, r1, s0, s1):
        for mod in ("quad_perm:[1,0,3,2] row_mask:0xf bank_mask:0xf", "quad_perm:[2,3,0,1] row_mask:0xf bank_mask:0xf",
                    "row_half_mirror row_mask:0xf bank_mask:0xf", "row_mirror row_mask:0xf bank_mask:0xf",
                    "row_bcast:15 row_mask:0xa bank_mask:0xf", "row_bcast:31 row_mask:0xc bank_mask:0xf"):
            a("s_nop 1")
            a(f"v_add_f32_dpp v{r0}, v{r0}, v{r0} {mod}")
            a(f"v_add_f32_dpp v{r1}, v{r1}, v{r1} {mod}")
        a("s_nop 1")
        a(f"v_readlane_b32 {s0}, v{r0}, 63")
        a(f"v_readlane_b32 {s1}, v{r1}, 63")
        a("s_nop 1")

    for b in range(2):
        base = 32 + 16 * b
        a(f"v_add_f32 v{24+b}, v{base}, v{base+1}")
        for i in range(2, 16):
            a(f"v_add_f32 v{24+b}, v{24+b}, v{base+i}")
    wave_sum2(24, 25, "s30", "s31")
    a("v_mov_b32 v26, 0x3a800000")
    a("v_mul_f32 v24, s30, v26")
    a("v_mul_f32 v25, s31, v26")
    for b in range(2):
        base = 32 + 16 * b
        for i in range(16):
            a(f"v_sub_f32 v27, v{base+i}, v{24+b}")
            if i == 0:
                a(f"v_mul_f32 v{28+b}, v27, v27")
            else:
                a(f"v_fmac_f32 v{28+b}, v27, v27")
    wave_sum2(28, 29, "s30", "s31")
    a("v_mul_f32 v28, s30, v26")
    a("v_mul_f32 v29, s31, v26")
    a("v_cvt_pk_bf16_f32 v30, v24, v25")
    a("v_cvt_pk_bf16_f32 v31, v28, v29")
    a("v_lshlrev_b32 v24, 16, v30")
    a("v_and_b32 v25, 0xffff0000, v30")
    a("v_lshlrev_b32 v28, 16, v31")
    a("v_and_b32 v29, 0xffff0000, v31")
    a("v_add_f32 v28, 0x3727c5ac, v28")
    a("v_add_f32 v29, 0x3727c5ac, v29")
    a("v_cvt_pk_bf16_f32 v31, v28, v29")
    a("v_lshlrev_b32 v28, 16, v31")
    a("v_and_b32 v29, 0xffff0000, v31")
    a("v_sqrt_f32 v28, v28")
    a("v_sqrt_f32 v29, v29")
    a("s_nop 0")
    a("v_cvt_pk_bf16_f32 v31, v28, v29")
    a("v_lshlrev_b32 v28, 16, v31")
    a("v_and_b32 v29, 0xffff0000, v31")
    a("v_rcp_f32 v28, v28")
    a("v_rcp_f32 v29, v29")
    a("s_nop 0")
    for b in range(2):
        base = 32 + 16 * b
        for i in range(0, 16, 2):
            a(f"v_sub_f32 v{base+i}, v{base+i}, v{24+b}")
            a(f"v_sub_f32 v{base+i+1}, v{base+i+1}, v{24+b}")
            a(f"v_cvt_pk_bf16_f32 v30, v{base+i}, v{base+i+1}")
            a(f"v_lshlrev_b32 v{base+i}, 16, v30")
            a(f"v_and_b32 v{base+i+1}, 0xffff0000, v30")
            a(f"v_mul_f32 v{base+i}, v{base+i}, v{28+b}")
            a(f"v_mul_f32 v{base+i+1}, v{base+i+1}, v{28+b}")
            a(f"v_cvt_pk_bf16_f32 v{8+8*b+i//2}, v{base+i}, v{base+i+1}")
    a("v_lshrrev_b32 v3, 1, v1")
    a("v_lshlrev_b32 v3, 6, v3")
    a("v_and_b32 v4, 1, v1")
    a("v_lshl_add_u32 v3, v4, 3, v3")
    a(f"v_add_u32 v3, {XN}, v3")
    for b in range(2):
        for G in range(4):
            a(f"ds_write_b64 v3, v[{8+8*b+2*G}:{9+8*b+2*G}] offset:{b*XN_BS + 16*G}")
    a("s_and_b32 s36, s27, 3")
    a("s_lshl_b32 s30, s36, 9")
    a(f"s_add_u32 s30, s30, {XN}")
    a("v_lshrrev_b32 v4, 4, v1")
    a("v_lshlrev_b32 v4, 4, v4")
    a("v_and_b32 v5, 1, v1")
    a(f"v_mul_u32_u24 v5, {XN_BS}, v5")
    a("v_add3_u32 v5, v5, v4, s30")
    a(f"v_add_u32 v4, {ZR}, v4")
    a("v_bfe_u32 v6, v1, 1, 3")
    for nt in range(4):
        a(f"v_cmp_eq_u32 vcc, {nt}, v6")
        a("s_nop 1")
        a(f"v_cndmask_b32 v{24+nt}, v4, v5, vcc")
    a("s_waitcnt lgkmcnt(0)")
    BX = 64
    for t in range(8):
        for nt in range(4):
            r = BX + (t * 4 + nt) * 4
            a(f"ds_read_b128 v[{r}:{r+3}], v{24+nt} offset:{t*64}")
        a("s_waitcnt lgkmcnt(8)")
    a("v_lshrrev_b32 v4, 2, v1")
    a("v_lshlrev_b32 v4, 7, v4")
    a("v_and_b32 v5, 3, v1")
    a("v_lshl_add_u32 v4, v5, 3, v4")
    a("v_bfe_u32 v5, v1, 3, 2")
    for nt in range(4):
        a(f"v_xor_b32 v6, {nt}, v5")
        a(f"v_lshl_add_u32 v{28+nt}, v6, 5, v4")
    a("v_and_b32 v4, 1, v1")
    a("v_bfe_u32 v5, v1, 1, 2")
    a("v_lshrrev_b32 v6, 4, v1")
    a("v_lshlrev_b32 v5, 6, v5")
    a("v_lshl_add_u32 v5, v6, 4, v5")
    a("v_lshl_add_u32 v32, v4, 16, v5")
    a(f"v_mul_u32_u24 v6, {4*3584*4}, v4")
    a("v_add_u32 v33, v6, v5")
    a("s_lshr_b32 s38, s27, 2")
    a("s_lshl_b32 s30, s26, 3")
    a("s_add_u32 s30, s30, s38")
    a("s_lshl_b32 s30, s30, 8")
    a("s_lshl_b32 s31, s36, 14")
    a("s_add_u32 s30, s30, s31")
    a(f"s_add_u32 s30, s30, {WS_Q}")
    a("v_add_u32 v32, s30, v32")
    a("s_mul_i32 s30, s26, 7")
    a("s_add_u32 s30, s30, s38")
    a("s_lshl_b32 s30, s30, 8")
    a(f"s_mul_i32 s31, s36, {3584*4}")
    a("s_add_u32 s30, s30, s31")
    a(f"s_add_u32 s30, s30, {WS_H}")
    a("v_add_u32 v33, s30, v33")
    a("v_mov_b32 v34, s29")
    a(f"s_mov_b32 s39, {0xFFFFFFFF ^ TAGMASK}")
    a("s_mov_b32 s46, 0x00ff00ff")
    a("s_mov_b32 s47, 0x00ff00ff")
    a("s_waitcnt lgkmcnt(0)")

    def proj(seg, vaddr, freeflag):
        for t in range(8):
            if t % 2 == 0:
                lds_wait_ge(F_LANDED, segstart[seg] + 4 * (t + 2))
            wb = 192 + (t & 1) * 16
            for nt in range(4):
                r = wb + nt * 4
                a(f"ds_read_b64_tr_b16 v[{r}:{r+1}], v{28+nt} offset:{SLOT_A + t*4096}")
                a(f"ds_read_b64_tr_b16 v[{r+2}:{r+3}], v{28+nt} offset:{SLOT_A + t*4096 + 2048}")
            for nt in range(4):
                r = wb + nt * 4
                a(f"s_waitcnt lgkmcnt({6 - 2*nt})")
                bx = BX + (t * 4 + nt) * 4
                c = "0" if (t == 0 and nt == 0) else "v[40:43]"
                a(f"v_mfma_f32_16x16x32_bf16 v[40:43], v[{r}:{r+3}], v[{bx}:{bx+3}], {c}")
        if freeflag:
            lds_set(freeflag, 1)
        a("s_nop 7")
        for i in range(4):
            a(f"v_and_or_b32 v{44+i}, v{40+i}, s39, v34")
        a("s_mov_b64 exec, s[46:47]")
        a(f"global_store_dwordx4 {vaddr}, v[44:47], s[24:25] sc1")
        a("s_mov_b64 exec, -1")

    proj("wq", "v32", F_FREEA)
    stamp(1)
    a("s_cmp_ge_u32 s27, 28")
    a("s_cbranch_scc1 L_FIN")
    proj("w1", "v33", None)
    stamp(2)
    a.label("L_FIN")
    a("s_lshl_b32 s30, s26, 5")
    a("s_add_u32 s30, s30, s27")
    a("s_lshl_b32 s30, s30, 10")
    a(f"s_add_u32 s30, s30, {WS_S}")
    a("v_lshlrev_b32 v4, 4, v1")
    a("v_add_u32 v4, s30, v4")
    a(f"v_add_u32 v5, {WS_F - WS_S}, v4")
    lds_wait_ge(F_LANDED, NLOADS)
    stamp(3)
    a("s_mov_b32 s34, 0")
    a.label("L_FINP")
    a("global_load_dwordx4 v[8:11], v4, s[24:25] sc1")
    a("global_load_dwordx4 v[12:15], v5, s[24:25] sc1")
    a("s_add_u32 s34, s34, 1")
    a("s_waitcnt vmcnt(0)")
    a("v_xor_b32 v16, v8, v34")
    for r in (9, 10, 11, 12, 13, 14, 15):
        a(f"v_bitop3_b32 v16, v{r}, v34, v16 bitop3:0xbe")
    a(f"v_and_b32 v16, {TAGMASK}, v16")
    a("v_cmp_ne_u32 vcc, 0, v16")
    a(f"s_cmp_gt_u32 s34, {SPIN_MAX}")
    a("s_cbranch_scc1 L_FIND")
    a("s_cbranch_vccnz L_FINP")
    a.label("L_FIND")
    stamp(4)
    for r in range(8, 16):
        a(f"v_add_f32_dpp v{r}, v{r}, v{r} row_ror:2 row_mask:0xf bank_mask:0xf")
    for r in range(8, 16):
        a(f"v_add_f32_dpp v{r}, v{r}, v{r} row_ror:4 row_mask:0xf bank_mask:0xf")
    for r in range(8, 16):
        a(f"v_add_f32_dpp v{r}, v{r}, v{r} row_ror:8 row_mask:0xf bank_mask:0xf")
    for r in range(8, 16):
        a(f"v_mov_b32 v{r+8}, v{r}")
    a("s_nop 1")
    for r in range(8, 16):
        a(f"v_permlane16_swap_b32 v{r}, v{r+8}")
    for r in range(8, 16):
        a(f"v_add_f32 v{r}, v{r}, v{r+8}")
    for r in range(8, 16):
        a(f"v_mov_b32 v{r+8}, v{r}")
    a("s_nop 1")
    for r in range(8, 16):
        a(f"v_permlane32_swap_b32 v{r}, v{r+8}")
    for r in range(8, 16):
        a(f"v_add_f32 v{r}, v{r}, v{r+8}")
    a("s_nop 1")
    for r in range(8, 16):
        a(f"v_mov_b32_dpp v{r+8}, v{r} quad_perm:[1,0,3,2] row_mask:0xf bank_mask:0xf")
    a("v_bfe_u32 v24, v1, 2, 1")
    a("v_and_b32 v25, 1, v1")
    a("v_cmp_eq_u32 vcc, v24, v25")
    a("s_nop 1")
    for r in range(8, 16):
        a(f"v_cndmask_b32 v{r}, v{r+8}, v{r}, vcc")
    a("v_and_b32 v24, 3, v1")
    a("v_cmp_eq_u32 vcc, 1, v24")
    a("s_nop 1")
    a("v_cndmask_b32 v8, v8, v9, vcc")
    a("v_cndmask_b32 v12, v12, v13, vcc")
    a("v_cmp_eq_u32 vcc, 2, v24")
    a("s_nop 1")
    a("v_cndmask_b32 v8, v8, v10, vcc")
    a("v_cndmask_b32 v12, v12, v14, vcc")
    a("v_cmp_eq_u32 vcc, 3, v24")
    a("s_nop 1")
    a("v_cndmask_b32 v8, v8, v11, vcc")
    a("v_cndmask_b32 v12, v12, v15, vcc")
    a("v_cvt_pk_bf16_f32 v9, v8, v12")
    a("v_lshlrev_b32 v8, 16, v9")
    a("v_and_b32 v12, 0xffff0000, v9")
    a("v_mul_f32 v10, 0xbfb8aa3b, v12")
    a("v_exp_f32 v10, v10")
    a("s_nop 0")
    a("v_add_f32 v10, 1.0, v10")
    a("v_rcp_f32 v10, v10")
    a("s_nop 0")
    a("v_mul_f32 v10, v12, v10")
    a("v_cvt_pk_bf16_f32 v10, v10, v10")
    a("v_lshlrev_b32 v10, 16, v10")
    a("v_mul_f32 v10, v8, v10")
    a("v_cvt_pk_bf16_f32 v10, v10, v10")
    a("v_lshlrev_b32 v10, 16, v10")
    a("v_lshlrev_b32 v11, 16, v241")
    a("v_add_f32 v10, v11, v10")
    a("v_cvt_pk_bf16_f32 v10, v10, v10")
    a("s_mov_b64 exec, 0xff")
    a("global_store_short v240, v10, s[20:21]")
    a("s_cmp_lg_u32 s2, 0")
    a("s_cbranch_scc1 L_PEND")
    a("s_mov_b64 exec, 1")
    a("v_mov_b32 v4, 0")
    a("v_mov_b32 v5, s37")
    a(f"global_store_dword v4, v5, s[24:25] offset:{WS_EPOCH}")
    a.label("L_PEND")
    a("s_mov_b64 exec, -1")
    stamp(5)
    ts_out()
    a("s_endpgm")

    a.label("L_ATT")
    a("s_waitcnt lgkmcnt(0)")
    a("v_and_b32 v3, 7, v1")
    a("v_lshlrev_b32 v3, 9, v3")
    a("v_bfe_u32 v4, v1, 3, 1")
    a("v_lshl_add_u32 v3, v4, 8, v3")
    a("v_lshrrev_b32 v4, 4, v1")
    a("v_lshl_add_u32 v3, v4, 5, v3")
    a("s_lshr_b32 s30, s26, 2")
    a("s_lshl_b32 s30, s30, 16")
    a("s_and_b32 s31, s26, 3")
    a("s_lshl_b32 s31, s31, 12")
    a("s_add_u32 s30, s30, s31")
    a(f"s_add_u32 s30, s30, {WS_Q}")
    a("v_add_u32 v8, s30, v3")
    for ks in range(1, 4):
        a(f"v_add_u32 v{8+ks}, {ks*16384}, v8")
    a("v_and_b32 v5, 15, v1")
    for u in range(4):
        a(f"v_add_u32 v6, {4*u}, v4")
        a("v_xor_b32 v6, v6, v5")
        a("v_lshlrev_b32 v6, 4, v6")
        a(f"v_lshl_add_u32 v{12+u}, v5, 8, v6")
    a("v_lshrrev_b32 v5, 2, v1")
    a("v_and_b32 v6, 3, v1")
    a("v_lshlrev_b32 v6, 3, v6")
    a("v_lshl_add_u32 v6, v5, 8, v6")
    a(f"v_add_u32 v6, {SLOT_C}, v6")
    a("v_and_b32 v5, 7, v5")
    for dt in range(8):
        a(f"v_xor_b32 v7, {dt}, v5")
        a(f"v_lshl_add_u32 v{16+dt}, v7, 5, v6")
    a("v_and_b32 v3, 7, v1")
    a("v_lshlrev_b32 v24, 14, v3")
    a("v_lshl_add_u32 v24, v4, 4, v24")
    a("s_lshl_b32 s30, s26, 17")
    a("s_lshl_b32 s31, s27, 9")
    a("s_add_u32 s30, s30, s31")
    a(f"s_add_u32 s30, s30, {WS_O}")
    a("v_add_u32 v24, s30, v24")
    a("v_lshlrev_b32 v25, 8, v3")
    a("s_lshl_b32 s30, s26, 11")
    a("s_lshl_b32 s31, s27, 3")
    a("s_add_u32 s30, s30, s31")
    a(f"s_add_u32 s30, s30, {WS_ML}")
    a("v_add_u32 v25, s30, v25")
    for r in range(96, 128):
        a(f"v_mov_b32 v{r}, 0")
    get_tag()
    a("v_mov_b32 v26, s29")
    a(f"s_mov_b32 s39, {0xFFFFFFFF ^ TAGMASK}")
    lds_wait_ge(F_LANDED, segstart["k"] + 32)
    stamp(1)
    a("s_mov_b32 s34, 0")
    a.label("L_QP")
    for ks in range(4):
        for uu in range(2):
            for hh in range(2):
                r = 32 + ((ks * 2 + uu) * 2 + hh) * 4
                a(f"global_load_dwordx4 v[{r}:{r+3}], v{8+ks}, s[24:25] offset:{uu*128 + hh*16} sc1")
    a("s_add_u32 s34, s34, 1")
    a("s_waitcnt vmcnt(0)")
    a("v_xor_b32 v27, v32, v26")
    for r in range(33, 96):
        a(f"v_bitop3_b32 v27, v{r}, v26, v27 bitop3:0xbe")
    a(f"v_and_b32 v27, {TAGMASK}, v27")
    a("v_cmp_ne_u32 vcc, 0, v27")
    a(f"s_cmp_gt_u32 s34, {SPIN_MAX}")
    a("s_cbranch_scc1 L_QD")
    a("s_cbranch_vccnz L_QP")
    a.label("L_QD")
    stamp(2)
    for i in range(16):
        a(f"v_add_f32 v{32+i}, v{32+i}, v{48+i}")
        a(f"v_add_f32 v{64+i}, v{64+i}, v{80+i}")
    for i in range(16):
        a(f"v_add_f32 v{32+i}, v{32+i}, v{64+i}")
    for i in range(8):
        a(f"v_cvt_pk_bf16_f32 v{48+i}, v{32+2*i}, v{33+2*i}")
    a("s_nop 1")
    for uu in range(2):
        for j in range(4):
            src = 48 + uu * 4 + j
            a(f"v_mov_b32_dpp v{96+uu*4+j}, v{src} quad_perm:[0,1,2,3] row_mask:0xf bank_mask:0x3")
            a(f"v_mov_b32_dpp v{96+(2+uu)*4+j}, v{src} row_ror:8 row_mask:0xf bank_mask:0x3")
            a(f"v_mov_b32_dpp v{112+uu*4+j}, v{src} row_ror:8 row_mask:0xf bank_mask:0xc")
            a(f"v_mov_b32_dpp v{112+(2+uu)*4+j}, v{src} quad_perm:[0,1,2,3] row_mask:0xf bank_mask:0xc")
    def kread(T, T4):
        for u in range(4):
            r = 128 + (T4 * 4 + u) * 4
            a(f"ds_read_b128 v[{r}:{r+3}], v{12+u} offset:{SLOT_B + T*4096}")
    def kmfma(half, T4):
        for u in range(4):
            r = 128 + (T4 * 4 + u) * 4
            q = (96 if half == 0 else 112) + u * 4
            d = 32 + T4 * 4
            c = "0" if (half == 0 and u == 0) else f"v[{d}:{d+3}]"
            a(f"v_mfma_f32_16x16x32_bf16 v[{d}:{d+3}], v[{r}:{r+3}], v[{q}:{q+3}], {c}")
    for half in range(2):
        for T4 in range(3):
            kread(half * 4 + T4, T4)
        a("s_waitcnt lgkmcnt(8)")
        kmfma(half, 0)
        kread(half * 4 + 3, 3)
        a("s_waitcnt lgkmcnt(8)")
        kmfma(half, 1)
        a("s_waitcnt lgkmcnt(4)")
        kmfma(half, 2)
        a("s_waitcnt lgkmcnt(0)")
        kmfma(half, 3)
    lds_set(F_FREEB, 1)
    a("s_nop 7")
    a("s_mov_b32 s30, 0x3db504f3")
    for i in range(0, 16, 2):
        a(f"v_cvt_pk_bf16_f32 v48, v{32+i}, v{33+i}")
        a(f"v_lshlrev_b32 v{32+i}, 16, v48")
        a(f"v_and_b32 v{33+i}, 0xffff0000, v48")
        a(f"v_mul_f32 v{32+i}, s30, v{32+i}")
        a(f"v_mul_f32 v{33+i}, s30, v{33+i}")
        a(f"v_cvt_pk_bf16_f32 v48, v{32+i}, v{33+i}")
        a(f"v_lshlrev_b32 v{32+i}, 16, v48")
        a(f"v_and_b32 v{33+i}, 0xffff0000, v48")
    a("v_max3_f32 v48, v32, v33, v34")
    for i in range(3, 15, 2):
        a(f"v_max3_f32 v48, v48, v{32+i}, v{33+i}")
    a("v_max_f32 v48, v48, v47")
    a("s_nop 1")
    a("v_max_f32_dpp v48, v48, v48 row_ror:8 row_mask:0xf bank_mask:0xf")
    a("v_mov_b32 v49, v48")
    a("s_nop 1")
    a("v_permlane16_swap_b32 v48, v49")
    a("v_max_f32 v48, v48, v49")
    a("v_mov_b32 v49, v48")
    a("s_nop 1")
    a("v_permlane32_swap_b32 v48, v49")
    a("v_max_f32 v48, v48, v49")
    a("s_mov_b32 s31, 0x3fb8aa3b")
    for i in range(16):
        a(f"v_sub_f32 v{32+i}, v{32+i}, v48")
        a(f"v_mul_f32 v{32+i}, s31, v{32+i}")
        a(f"v_exp_f32 v{32+i}, v{32+i}")
    a("s_nop 0")
    a("v_add_f32 v49, v32, v33")
    for i in range(2, 16):
        a(f"v_add_f32 v49, v49, v{32+i}")
    for i in range(8):
        a(f"v_cvt_pk_bf16_f32 v{52+i}, v{32+2*i}, v{33+2*i}")
    a("v_add_f32_dpp v49, v49, v49 row_ror:8 row_mask:0xf bank_mask:0xf")
    a("s_nop 0")
    for i in range(8):
        a(f"v_mov_b32_dpp v{60+i}, v{52+i} row_ror:8 row_mask:0xf bank_mask:0xf")
    a("v_mov_b32 v50, v49")
    a("s_nop 1")
    a("v_permlane16_swap_b32 v49, v50")
    a("v_add_f32 v49, v49, v50")
    a("v_mov_b32 v50, v49")
    a("s_nop 1")
    a("v_permlane32_swap_b32 v49, v50")
    a("v_add_f32 v49, v49, v50")
    a("v_or_b32 v48, v48, v26")
    a("v_and_or_b32 v49, v49, s39, v26")
    stamp(3)
    lds_wait_ge(F_LANDED, segstart["v"] + 32)
    stamp(4)
    for half in range(2):
        for dd in range(4):
            dt = half * 4 + dd
            for up in range(4):
                r = 128 + (dd * 4 + up) * 4
                a(f"ds_read_b64_tr_b16 v[{r}:{r+1}], v{16+dt} offset:{up*8192}")
                a(f"ds_read_b64_tr_b16 v[{r+2}:{r+3}], v{16+dt} offset:{up*8192 + 4096}")
            if dd >= 1:
                a("s_waitcnt lgkmcnt(8)")
                for up in range(4):
                    r = 128 + ((dd - 1) * 4 + up) * 4
                    d = 96 + (dt - 1) * 4
                    p = 52 + up * 4
                    c = "0" if up == 0 else f"v[{d}:{d+3}]"
                    a(f"v_mfma_f32_16x16x32_bf16 v[{d}:{d+3}], v[{r}:{r+3}], v[{p}:{p+3}], {c}")
        a("s_waitcnt lgkmcnt(0)")
        for up in range(4):
            r = 128 + (3 * 4 + up) * 4
            d = 96 + (half * 4 + 3) * 4
            p = 52 + up * 4
            c = "0" if up == 0 else f"v[{d}:{d+3}]"
            a(f"v_mfma_f32_16x16x32_bf16 v[{d}:{d+3}], v[{r}:{r+3}], v[{p}:{p+3}], {c}")
    a("s_mov_b32 s46, 0x00ff00ff")
    a("s_mov_b32 s47, 0x00ff00ff")
    a("s_nop 7")
    for i in range(32):
        a(f"v_and_or_b32 v{96+i}, v{96+i}, s39, v26")
    a("s_mov_b64 exec, s[46:47]")
    for dt in range(8):
        a(f"global_store_dwordx4 v24, v[{96+dt*4}:{99+dt*4}], s[24:25] offset:{dt*64} sc1")
    a("s_mov_b64 exec, 0xff")
    a("global_store_dwordx2 v25, v[48:49], s[24:25] sc1")
    a("s_mov_b64 exec, -1")
    stamp(5)
    ts_out()
    a("s_endpgm")

    a.label("L_OG")
    a("s_waitcnt lgkmcnt(0)")
    a("s_sub_u32 s36, s28, 3")
    a("v_lshrrev_b32 v3, 5, v1")
    a("v_lshlrev_b32 v3, 13, v3")
    a("v_and_b32 v4, 31, v1")
    a("v_lshl_add_u32 v3, v4, 4, v3")
    a("s_lshl_b32 s30, s36, 5")
    a("s_add_u32 s30, s30, s27")
    a("s_lshl_b32 s31, s30, 14")
    a(f"s_add_u32 s31, s31, {WS_O}")
    a("v_add_u32 v8, s31, v3")
    a("v_add_u32 v9, 4096, v8")
    a("s_lshl_b32 s31, s30, 8")
    a(f"s_add_u32 s31, s31, {WS_ML}")
    a("v_lshlrev_b32 v10, 3, v4")
    a("v_add_u32 v10, s31, v10")
    a("s_lshl_b32 s31, s36, 7")
    a(f"s_add_u32 s31, s31, {WB}")
    a("v_lshlrev_b32 v11, 2, v4")
    a("v_add_u32 v11, s31, v11")
    a("v_lshrrev_b32 v12, 5, v1")
    a("v_lshlrev_b32 v12, 6, v12")
    a("v_add_u32 v12, s31, v12")
    a("v_lshrrev_b32 v5, 3, v4")
    a("v_lshlrev_b32 v5, 6, v5")
    a("v_and_b32 v6, 3, v4")
    a("v_lshl_add_u32 v5, v6, 4, v5")
    a("v_bfe_u32 v6, v4, 2, 1")
    a("v_lshl_add_u32 v5, v6, 3, v5")
    a(f"s_mul_i32 s31, s36, {OB_BS}")
    a(f"s_add_u32 s31, s31, {OB}")
    a("v_add_u32 v13, s31, v5")
    get_tag()
    a("v_mov_b32 v26, s29")
    a(f"s_mov_b32 s39, {0xFFFFFFFF ^ TAGMASK}")
    lds_wait_ge(F_LANDED, segstart["wo"] + 8)
    stamp(1)
    a("s_mov_b32 s34, 0")
    a.label("L_OP")
    a("global_load_dwordx2 v[14:15], v10, s[24:25] sc1")
    for i in range(16):
        va = "v8" if i < 8 else "v9"
        a(f"global_load_dwordx4 v[{32+4*i}:{35+4*i}], {va}, s[24:25] offset:{(i&7)*512} sc1")
    a("s_add_u32 s34, s34, 1")
    a("s_waitcnt vmcnt(0)")
    a("v_xor_b32 v27, v14, v26")
    a("v_bitop3_b32 v27, v15, v26, v27 bitop3:0xbe")
    for r in range(32, 96):
        a(f"v_bitop3_b32 v27, v{r}, v26, v27 bitop3:0xbe")
    a(f"v_and_b32 v27, {TAGMASK}, v27")
    a("v_cmp_ne_u32 vcc, 0, v27")
    a(f"s_cmp_gt_u32 s34, {SPIN_MAX}")
    a("s_cbranch_scc1 L_OD")
    a("s_cbranch_vccnz L_OP")
    a.label("L_OD")
    stamp(2)
    a("v_and_b32 v14, 0xffff0000, v14")
    a("v_mov_b32 v16, v14")
    for mod in ("quad_perm:[1,0,3,2]", "quad_perm:[2,3,0,1]", "row_half_mirror", "row_mirror"):
        a("s_nop 1")
        a(f"v_max_f32_dpp v16, v16, v16 {mod} row_mask:0xf bank_mask:0xf")
    a("v_mov_b32 v17, v16")
    a("s_nop 1")
    a("v_permlane16_swap_b32 v16, v17")
    a("v_max_f32 v16, v16, v17")
    a("v_sub_f32 v14, v14, v16")
    a("v_mul_f32 v14, 0x3fb8aa3b, v14")
    a("v_exp_f32 v14, v14")
    a("s_nop 0")
    a("v_mul_f32 v16, v14, v15")
    for mod in ("quad_perm:[1,0,3,2]", "quad_perm:[2,3,0,1]", "row_half_mirror", "row_mirror"):
        a("s_nop 1")
        a(f"v_add_f32_dpp v16, v16, v16 {mod} row_mask:0xf bank_mask:0xf")
    a("v_mov_b32 v17, v16")
    a("s_nop 1")
    a("v_permlane16_swap_b32 v16, v17")
    a("v_add_f32 v16, v16, v17")
    a("v_rcp_f32 v16, v16")
    a("s_nop 0")
    a("v_mul_f32 v14, v14, v16")
    a("ds_write_b32 v11, v14")
    a("s_waitcnt lgkmcnt(0)")
    for i in range(4):
        a(f"ds_read_b128 v[{96+4*i}:{99+4*i}], v12 offset:{16*i}")
    a("s_waitcnt lgkmcnt(0)")
    for j in range(4):
        a(f"v_mul_f32 v{16+j}, v96, v{32+j}")
    for i in range(1, 16):
        for j in range(4):
            a(f"v_fmac_f32 v{16+j}, v{96+i}, v{32+4*i+j}")
    for j in range(4):
        a(f"v_mov_b32 v{20+j}, v{16+j}")
    a("s_nop 1")
    for j in range(4):
        a(f"v_permlane32_swap_b32 v{16+j}, v{20+j}")
    for j in range(4):
        a(f"v_add_f32 v{16+j}, v{16+j}, v{20+j}")
    a("v_cvt_pk_bf16_f32 v20, v16, v17")
    a("v_cvt_pk_bf16_f32 v21, v18, v19")
    a("ds_write_b64 v13, v[20:21]")
    a("s_waitcnt lgkmcnt(0)")
    a("s_cmp_eq_u32 s36, 0")
    a("s_cbranch_scc1 L_WO")
    lds_set(F_O1, 1)
    stamp(3)
    ts_out()
    a("s_endpgm")

    def gemv_setup(vec, slot, wsbase):
        a("v_lshrrev_b32 v4, 4, v1")
        a("v_lshlrev_b32 v4, 4, v4")
        a("v_and_b32 v5, 1, v1")
        a(f"v_mul_u32_u24 v5, {OB_BS}, v5")
        a(f"v_add_u32 v5, {vec}, v5")
        a("v_add_u32 v5, v5, v4")
        a(f"v_add_u32 v4, {ZR}, v4")
        a("v_bfe_u32 v6, v1, 1, 3")
        for nt in range(8):
            a(f"v_cmp_eq_u32 vcc, {2*(nt&3) + (nt>>2)}, v6")
            a("s_nop 1")
            a(f"v_cndmask_b32 v{16+nt}, v4, v5, vcc")
        a("v_lshrrev_b32 v5, 2, v1")
        a("v_and_b32 v6, 3, v1")
        a("v_lshlrev_b32 v6, 3, v6")
        a("v_lshl_add_u32 v6, v5, 8, v6")
        a(f"v_add_u32 v6, {slot}, v6")
        a("v_and_b32 v5, 7, v5")
        for nt in range(8):
            a(f"v_xor_b32 v7, {nt}, v5")
            a(f"v_lshl_add_u32 v{240+nt}, v7, 5, v6")
        a("v_lshrrev_b32 v5, 2, v1")
        a("v_lshlrev_b32 v5, 10, v5")
        a("v_and_b32 v6, 3, v1")
        a("v_lshl_add_u32 v5, v6, 3, v5")
        a("s_lshl_b32 s30, s26, 15")
        a("s_lshl_b32 s31, s27, 5")
        a("s_add_u32 s30, s30, s31")
        a(f"s_add_u32 s30, s30, {wsbase}")
        a("v_add_u32 v248, s30, v5")
        a("v_add_u32 v249, 16384, v248")

    def gemv_run(seg, halfstep_last):
        first = True
        for u in range(4):
            half = halfstep_last and u == 3
            need = segstart[seg] + (8 * u + (4 if half else 8))
            lds_wait_ge(F_LANDED, need)
            wb = 32 + (u & 1) * 32
            ab = 96 + (u & 1) * 32
            for g2 in range(2):
                for nt in range(g2 * 4, g2 * 4 + 4):
                    a(f"ds_read_b64_tr_b16 v[{wb+nt*4}:{wb+nt*4+1}], v{240+nt} offset:{u*8192}")
                    if not half:
                        a(f"ds_read_b64_tr_b16 v[{wb+nt*4+2}:{wb+nt*4+3}], v{240+nt} offset:{u*8192+4096}")
                    a(f"ds_read_b128 v[{ab+nt*4}:{ab+nt*4+3}], v{16+nt} offset:{u*64}")
                a("s_waitcnt lgkmcnt(0)")
                for nt in range(g2 * 4, g2 * 4 + 4):
                    c = "0" if first else "v[28:31]"
                    first = False
                    if half:
                        a(f"v_mfma_f32_16x16x16_bf16 v[28:31], v[{ab+nt*4}:{ab+nt*4+1}], v[{wb+nt*4}:{wb+nt*4+1}], {c}")
                    else:
                        a(f"v_mfma_f32_16x16x32_bf16 v[28:31], v[{ab+nt*4}:{ab+nt*4+3}], v[{wb+nt*4}:{wb+nt*4+3}], {c}")
        a("s_nop 7")
        for i in range(4):
            a(f"v_and_or_b32 v{28+i}, v{28+i}, s39, v26")
        a("global_store_dwordx2 v248, v[28:29], s[24:25] sc1")
        a("global_store_dwordx2 v249, v[30:31], s[24:25] sc1")

    a.label("L_WO")
    gemv_setup(OB, SLOT_D, WS_S)
    lds_wait_ge(F_O1, 1)
    stamp(3)
    gemv_run("wo", False)
    stamp(4)
    ts_out()
    a("s_endpgm")

    a.label("L_W2")
    a("s_waitcnt lgkmcnt(0)")
    gemv_setup(HB, SLOT_B, WS_F)
    a("v_lshrrev_b32 v3, 5, v1")
    a(f"v_mul_u32_u24 v3, {4*3584*4}, v3")
    a("v_and_b32 v4, 31, v1")
    a("v_min_u32 v5, 27, v4")
    a("v_lshl_add_u32 v3, v5, 4, v3")
    a(f"s_mul_i32 s30, s27, {112*4}")
    a(f"s_add_u32 s30, s30, {WS_H}")
    a("v_add_u32 v8, s30, v3")
    for ks in range(1, 4):
        a(f"v_add_u32 v{8+ks}, {ks*3584*4}, v8")
    a("v_lshrrev_b32 v5, 3, v4")
    a("v_lshlrev_b32 v5, 6, v5")
    a("v_and_b32 v6, 3, v4")
    a("v_lshl_add_u32 v5, v6, 4, v5")
    a("v_bfe_u32 v6, v4, 2, 1")
    a("v_lshl_add_u32 v5, v6, 3, v5")
    a("v_lshrrev_b32 v6, 5, v1")
    a(f"v_mul_u32_u24 v6, {OB_BS}, v6")
    a(f"v_add_u32 v6, {HB}, v6")
    a("v_add_u32 v13, v5, v6")
    get_tag()
    a("v_mov_b32 v26, s29")
    a(f"s_mov_b32 s39, {0xFFFFFFFF ^ TAGMASK}")
    lds_wait_ge(F_LANDED, min(NLOADS, segstart["w1"] + 32 + 16))
    stamp(1)
    a("s_mov_b32 s34, 0")
    a.label("L_HP")
    for ks in range(4):
        a(f"global_load_dwordx4 v[{32+4*ks}:{35+4*ks}], v{8+ks}, s[24:25] sc1")
    a("s_add_u32 s34, s34, 1")
    a("s_waitcnt vmcnt(0)")
    a("v_xor_b32 v27, v32, v26")
    for r in range(33, 48):
        a(f"v_bitop3_b32 v27, v{r}, v26, v27 bitop3:0xbe")
    a(f"v_and_b32 v27, {TAGMASK}, v27")
    a("v_cmp_ne_u32 vcc, 0, v27")
    a(f"s_cmp_gt_u32 s34, {SPIN_MAX}")
    a("s_cbranch_scc1 L_HD")
    a("s_cbranch_vccnz L_HP")
    a.label("L_HD")
    stamp(2)
    for j in range(4):
        a(f"v_add_f32 v{32+j}, v{32+j}, v{36+j}")
        a(f"v_add_f32 v{40+j}, v{40+j}, v{44+j}")
    for j in range(4):
        a(f"v_add_f32 v{32+j}, v{32+j}, v{40+j}")
    for j in range(4):
        a(f"v_max_f32 v{32+j}, 0, v{32+j}")
    a("v_cvt_pk_bf16_f32 v36, v32, v33")
    a("v_cvt_pk_bf16_f32 v37, v34, v35")
    a("ds_write_b64 v13, v[36:37]")
    a("s_waitcnt lgkmcnt(0)")
    gemv_run("w2", True)
    stamp(3)
    ts_out()
    a.label("L_end")
    a("s_endpgm")
    open(fn, "w").write(wrap_single(a.text(), 256, 384, LDS_TOTAL, 256))


if __name__ == "__main__":
    gen("k1.s", ts=False)
    gen("k1_ts.s", ts=True)
```

```python
import sys
from common import *

SLOT_A = 0
SLOT_B = 32768
SLOT_C = 65536
SLOT_D = 98304
MISC = 131072
XN = MISC
XN_BS = 2048 + 64
OB = XN + 2 * XN_BS
OB_BS = 320
HB = OB + 2 * OB_BS
ZR = HB + 2 * OB_BS
ZR_SZ = 640
WB = ZR + ZR_SZ
FL = WB + 256
F_LANDED = FL
F_TAG = FL + 256
F_FREEA = FL + 512
F_FREEB = FL + 768
F_O0 = FL + 1024
F_O1 = FL + 1280
LDS_TOTAL = FL + 1536

WS_EPOCH = 0
WS_Q = 0x10000
WS_H = 0x40000
WS_O = 0x80000
WS_ML = 0x180000
WS_S = 0x190000
WS_F = 0x1D0000
WS_TS = 0x8000000

TAGMASK = 0xFFF
SPIN_MAX = 200000


def gen(fn, D=24, ts=False, dbg=False, order=("wq", "k", "v", "w1", "wo", "w2")):
    a = Asm()
    uid = [0]

    def L(prefix):
        uid[0] += 1
        return f"L_{prefix}_{uid[0]}"

    NTS = 8

    def stamp(i):
        if ts:
            a(f"s_memrealtime s[{84+2*i}:{85+2*i}]")

    if ts:
        a("s_memrealtime s[84:85]")
        for i in range(1, NTS):
            a(f"s_mov_b64 s[{84+2*i}:{85+2*i}], 0")
    a("s_cmp_ge_u32 s2, 256")
    a("s_cbranch_scc1 L_end")
    a("s_load_dwordx16 s[4:19], s[0:1], 0")
    a("s_load_dwordx4 s[20:23], s[0:1], 64")
    a("s_load_dwordx2 s[24:25], s[0:1], 80")
    a("v_lshrrev_b32 v2, 6, v0")
    a("v_and_b32 v1, 63, v0")
    a("v_readfirstlane_b32 s28, v2")
    a("s_and_b32 s26, s2, 7")
    a("s_lshr_b32 s27, s2, 3")
    assert LDS_TOTAL - ZR <= 384 * 8
    a("v_lshlrev_b32 v3, 3, v0")
    a("v_mov_b32 v4, 0")
    a("v_mov_b32 v5, 0")
    a(f"v_cmp_gt_u32 vcc, {(LDS_TOTAL - ZR)//8}, v0")
    a("s_and_saveexec_b64 s[30:31], vcc")
    a(f"ds_write_b64 v3, v[4:5] offset:{ZR - 65536*2 + 65536*2}" if ZR < 65536 else f"v_add_u32 v3, {ZR}, v3")
    if ZR >= 65536:
        a("ds_write_b64 v3, v[4:5]")
    a("s_mov_b64 exec, s[30:31]")
    a("s_waitcnt lgkmcnt(0)")
    a("s_barrier")
    a("s_cmp_eq_u32 s28, 1")
    a("s_cbranch_scc1 L_P")
    a("s_cmp_eq_u32 s28, 2")
    a("s_cbranch_scc1 L_ATT")
    a("s_cmp_eq_u32 s28, 3")
    a("s_cbranch_scc1 L_OG")
    a("s_cmp_eq_u32 s28, 4")
    a("s_cbranch_scc1 L_OG")
    a("s_cmp_eq_u32 s28, 5")
    a("s_cbranch_scc1 L_W2")

    def lds_wait_ge(flag, val, vtmp="v250", vaddr="v251"):
        lab = L("w")
        done = L("wd")
        a(f"v_mov_b32 {vaddr}, {flag}")
        a("s_mov_b32 s34, 0")
        a.label(lab)
        a(f"ds_read_b32 {vtmp}, {vaddr}")
        a("s_add_u32 s34, s34, 1")
        a("s_waitcnt lgkmcnt(0)")
        a(f"v_readfirstlane_b32 s35, {vtmp}")
        a(f"s_cmp_gt_u32 s34, {SPIN_MAX}")
        a(f"s_cbranch_scc1 {done}")
        a(f"s_cmp_lt_u32 s35, {val}")
        a(f"s_cbranch_scc1 {lab}")
        a.label(done)

    def lds_set(flag, val, vtmp="v250", vaddr="v251"):
        a(f"v_lshlrev_b32 {vaddr}, 2, v1")
        a(f"v_add_u32 {vaddr}, {flag}, {vaddr}")
        a(f"v_mov_b32 {vtmp}, {val}")
        a(f"ds_write_b32 {vaddr}, {vtmp}")

    def get_tag():
        lds_wait_ge(F_TAG, 1)
        a(f"s_and_b32 s29, s35, {TAGMASK}")

    def ts_out():
        if not ts:
            return
        a("s_waitcnt lgkmcnt(0)")
        if dbg:
            a("s_memrealtime s[86:87]")
            a("s_waitcnt lgkmcnt(0)")
            a("s_mov_b64 exec, 1")
            a("s_not_b32 s30, s84")
            a("v_mov_b32 v4, s30")
            a("v_mov_b32 v2, 0")
            a("global_atomic_umax v2, v4, s[22:23] sc1")
            a("v_mov_b32 v4, s84")
            a("global_atomic_umax v2, v4, s[22:23] offset:32 sc1")
            a("s_lshl_b32 s30, s28, 2")
            a("v_mov_b32 v2, s30")
            a("v_mov_b32 v5, s86")
            a("global_atomic_umax v2, v5, s[22:23] offset:4 sc1")
            return
        a(f"s_mul_i32 s30, s2, {6*NTS*8}")
        a(f"s_mul_i32 s31, s28, {NTS*8}")
        a("s_add_u32 s30, s30, s31")
        a("v_mov_b32 v2, s30")
        a(f"s_add_u32 s32, s24, {WS_TS}")
        a("s_addc_u32 s33, s25, 0")
        a("s_mov_b64 exec, 1")
        for j in range(NTS):
            a(f"v_mov_b32 v4, s{84+2*j}")
            a(f"v_mov_b32 v5, s{85+2*j}")
            a(f"global_store_dwordx2 v2, v[4:5], s[32:33] offset:{8*j}")
            a("s_nop 1")

    seglen = {"wq": 32, "k": 32, "v": 32, "w1": 32, "wo": 32, "w2": 28}
    segstart = {}
    n = 0
    for s in order:
        segstart[s] = n
        n += seglen[s]
    NLOADS = n

    a("s_waitcnt lgkmcnt(0)")
    srd = {"k": (64, 6, 0x4000000), "v": (68, 8, 0x4000000), "wq": (72, 10, 0x800000), "wo": (76, 12, 0x800000),
           "w1": (80, 16, 0x700000), "w2": (60, 18, 0x700000)}
    for nme, (r, p, sz) in srd.items():
        a(f"s_mov_b32 s{r}, s{p}")
        a(f"s_and_b32 s{r+1}, s{p+1}, 0xffff")
        a(f"s_mov_b32 s{r+2}, {sz}")
        a(f"s_mov_b32 s{r+3}, 0x20000")
    a("v_bfe_u32 v3, v1, 1, 2")
    a("v_lshrrev_b32 v4, 4, v1")
    a("v_xor_b32 v3, v3, v4")
    a("v_lshlrev_b32 v3, 1, v3")
    a("v_and_b32 v5, 1, v1")
    a("v_or_b32 v3, v3, v5")
    a("v_lshlrev_b32 v3, 4, v3")
    a("v_lshrrev_b32 v5, 3, v1")
    a("v_lshl_add_u32 v10, v5, 13, v3")
    a("v_mul_u32_u24 v6, 7168, v5")
    a("v_add_u32 v11, v6, v3")
    a("v_and_b32 v6, 15, v1")
    for i in range(4):
        a(f"v_add_u32 v7, {4*i}, v4")
        a("v_xor_b32 v7, v7, v6")
        a("v_lshlrev_b32 v7, 4, v7")
        a(f"v_lshl_add_u32 v{12+i}, v4, 8, v7")
    for i in range(2):
        a(f"v_add_u32 v7, {4*i}, v4")
        a("v_lshlrev_b32 v7, 1, v7")
        a("v_xor_b32 v7, v7, v6")
        a("v_lshlrev_b32 v7, 4, v7")
        a(f"v_lshl_add_u32 v{16+i}, v4, 8, v7")
        a(f"v_lshl_add_u32 v{18+i}, v4, 11, v7")
    a("s_and_b32 s36, s27, 3")
    a("s_lshr_b32 s37, s27, 2")
    a("s_lshl_b32 s40, s36, 21")
    a("s_lshl_b32 s38, s26, 3")
    a("s_add_u32 s38, s38, s37")
    a("s_lshl_b32 s38, s38, 7")
    a("s_add_u32 s40, s40, s38")
    a(f"s_mul_i32 s41, s36, {256*7168}")
    a("s_mul_i32 s38, s26, 7")
    a("s_add_u32 s38, s38, s37")
    a("s_lshl_b32 s38, s38, 7")
    a("s_add_u32 s41, s41, s38")
    a("s_lshl_b32 s42, s26, 23")
    a("s_lshl_b32 s38, s27, 15")
    a("s_add_u32 s42, s42, s38")
    a("s_add_u32 s42, s42, 0x700000")
    a("s_lshl_b32 s43, s27, 18")
    a("s_lshl_b32 s38, s26, 8")
    a("s_add_u32 s43, s43, s38")
    a(f"s_mul_i32 s44, s27, {112*2048}")
    a("s_add_u32 s44, s44, s38")
    a("v_lshlrev_b32 v20, 2, v1")
    a(f"v_add_u32 v20, {F_LANDED}, v20")
    a("s_cmp_ge_u32 s27, 28")
    a("s_cselect_b32 s82, 0, s82")

    seginfo = {
        "wq": ("s40", lambda i: "v10", 8 * 8192, SLOT_A),
        "w1": ("s41", lambda i: "v11", 8 * 7168, SLOT_A),
        "k": ("s42", lambda i: f"v{12 + (i & 3)}", 1024, SLOT_B),
        "v": ("s42", lambda i: f"v{16 + (i & 1)}", 1024, SLOT_C),
        "wo": ("s43", lambda i: f"v{18 + (i & 1)}", 4 * 2048, SLOT_D),
        "w2": ("s44", lambda i: f"v{18 + (i & 1)}", 4 * 2048, SLOT_B),
    }
    cnt = 0
    GR = 4
    for s in order:
        base, vo, step, slot = seginfo[s]
        r = srd[s][0]
        if s == "w1":
            lds_wait_ge(F_FREEA, 1, "v22", "v23")
        if s == "w2":
            lds_wait_ge(F_FREEB, 1, "v22", "v23")
        for i in range(seglen[s]):
            if cnt >= D and (cnt - D) % GR == 0:
                a(f"s_waitcnt vmcnt({D - GR})")
                a(f"v_mov_b32 v21, {cnt - (D - GR)}")
                a("ds_write_b32 v20, v21")
            a(f"s_mov_b32 m0, {slot + i*1024}")
            a(f"s_add_u32 s45, {base}, {i*step}")
            a(f"buffer_load_dwordx4 {vo(i)}, s[{r}:{r+3}], s45 offen nt lds")
            cnt += 1
    stamp(1)
    k = D - GR
    while k >= 0:
        a(f"s_waitcnt vmcnt({k})")
        a(f"v_mov_b32 v21, {NLOADS - k}")
        a("ds_write_b32 v20, v21")
        k -= GR
    stamp(2)
    ts_out()
    a("s_endpgm")

    a.label("L_P")
    a("s_waitcnt lgkmcnt(0)")
    a("v_lshlrev_b32 v3, 5, v1")
    a("global_load_dwordx4 v[8:11], v3, s[4:5]")
    a("global_load_dwordx4 v[12:15], v3, s[4:5] offset:16")
    a("global_load_dwordx4 v[16:19], v3, s[4:5] offset:2048")
    a("global_load_dwordx4 v[20:23], v3, s[4:5] offset:2064")
    a(f"s_load_dword s36, s[24:25], {WS_EPOCH}")
    a("v_and_b32 v4, 1, v1")
    a("v_lshlrev_b32 v4, 11, v4")
    a("v_bfe_u32 v5, v1, 1, 2")
    a("v_lshl_add_u32 v4, v5, 1, v4")
    a("s_lshl_b32 s30, s26, 8")
    a("s_lshl_b32 s31, s27, 3")
    a("s_add_u32 s30, s30, s31")
    a("v_add_u32 v240, s30, v4")
    a("global_load_ushort v241, v240, s[4:5]")
    a("s_waitcnt lgkmcnt(0)")
    a("s_mul_i32 s37, s36, 1664525")
    a("s_add_u32 s37, s37, 1013904223")
    a(f"s_and_b32 s29, s37, {TAGMASK}")
    a("s_or_b32 s30, s29, 0x1000")
    lds_set(F_TAG, "s30")
    a("s_waitcnt vmcnt(1)")
    for b in range(2):
        for i in range(8):
            src = 8 + 8 * b + i
            a(f"v_lshlrev_b32 v{32+16*b+2*i}, 16, v{src}")
            a(f"v_and_b32 v{33+16*b+2*i}, 0xffff0000, v{src}")

    def wave_sum2(r0, r1, s0, s1):
        for mod in ("quad_perm:[1,0,3,2] row_mask:0xf bank_mask:0xf", "quad_perm:[2,3,0,1] row_mask:0xf bank_mask:0xf",
                    "row_half_mirror row_mask:0xf bank_mask:0xf", "row_mirror row_mask:0xf bank_mask:0xf",
                    "row_bcast:15 row_mask:0xa bank_mask:0xf", "row_bcast:31 row_mask:0xc bank_mask:0xf"):
            a("s_nop 1")
            a(f"v_add_f32_dpp v{r0}, v{r0}, v{r0} {mod}")
            a(f"v_add_f32_dpp v{r1}, v{r1}, v{r1} {mod}")
        a("s_nop 1")
        a(f"v_readlane_b32 {s0}, v{r0}, 63")
        a(f"v_readlane_b32 {s1}, v{r1}, 63")
        a("s_nop 1")

    for b in range(2):
        base = 32 + 16 * b
        a(f"v_add_f32 v{24+b}, v{base}, v{base+1}")
        for i in range(2, 16):
            a(f"v_add_f32 v{24+b}, v{24+b}, v{base+i}")
    wave_sum2(24, 25, "s30", "s31")
    a("v_mov_b32 v26, 0x3a800000")
    a("v_mul_f32 v24, s30, v26")
    a("v_mul_f32 v25, s31, v26")
    for b in range(2):
        base = 32 + 16 * b
        for i in range(16):
            a(f"v_sub_f32 v27, v{base+i}, v{24+b}")
            if i == 0:
                a(f"v_mul_f32 v{28+b}, v27, v27")
            else:
                a(f"v_fmac_f32 v{28+b}, v27, v27")
    wave_sum2(28, 29, "s30", "s31")
    a("v_mul_f32 v28, s30, v26")
    a("v_mul_f32 v29, s31, v26")
    a("v_cvt_pk_bf16_f32 v30, v24, v25")
    a("v_cvt_pk_bf16_f32 v31, v28, v29")
    a("v_lshlrev_b32 v24, 16, v30")
    a("v_and_b32 v25, 0xffff0000, v30")
    a("v_lshlrev_b32 v28, 16, v31")
    a("v_and_b32 v29, 0xffff0000, v31")
    a("v_add_f32 v28, 0x3727c5ac, v28")
    a("v_add_f32 v29, 0x3727c5ac, v29")
    a("v_cvt_pk_bf16_f32 v31, v28, v29")
    a("v_lshlrev_b32 v28, 16, v31")
    a("v_and_b32 v29, 0xffff0000, v31")
    a("v_sqrt_f32 v28, v28")
    a("v_sqrt_f32 v29, v29")
    a("s_nop 0")
    a("v_cvt_pk_bf16_f32 v31, v28, v29")
    a("v_lshlrev_b32 v28, 16, v31")
    a("v_and_b32 v29, 0xffff0000, v31")
    a("v_rcp_f32 v28, v28")
    a("v_rcp_f32 v29, v29")
    a("s_nop 0")
    for b in range(2):
        base = 32 + 16 * b
        for i in range(0, 16, 2):
            a(f"v_sub_f32 v{base+i}, v{base+i}, v{24+b}")
            a(f"v_sub_f32 v{base+i+1}, v{base+i+1}, v{24+b}")
            a(f"v_cvt_pk_bf16_f32 v30, v{base+i}, v{base+i+1}")
            a(f"v_lshlrev_b32 v{base+i}, 16, v30")
            a(f"v_and_b32 v{base+i+1}, 0xffff0000, v30")
            a(f"v_mul_f32 v{base+i}, v{base+i}, v{28+b}")
            a(f"v_mul_f32 v{base+i+1}, v{base+i+1}, v{28+b}")
            a(f"v_cvt_pk_bf16_f32 v{8+8*b+i//2}, v{base+i}, v{base+i+1}")
    a("v_lshrrev_b32 v3, 1, v1")
    a("v_lshlrev_b32 v3, 6, v3")
    a("v_and_b32 v4, 1, v1")
    a("v_lshl_add_u32 v3, v4, 3, v3")
    a(f"v_add_u32 v3, {XN}, v3")
    for b in range(2):
        for G in range(4):
            a(f"ds_write_b64 v3, v[{8+8*b+2*G}:{9+8*b+2*G}] offset:{b*XN_BS + 16*G}")
    a("s_and_b32 s36, s27, 3")
    a("s_lshl_b32 s30, s36, 9")
    a(f"s_add_u32 s30, s30, {XN}")
    a("v_lshrrev_b32 v4, 4, v1")
    a("v_lshlrev_b32 v4, 4, v4")
    a("v_and_b32 v5, 1, v1")
    a(f"v_mul_u32_u24 v5, {XN_BS}, v5")
    a("v_add3_u32 v5, v5, v4, s30")
    a(f"v_add_u32 v4, {ZR}, v4")
    a("v_bfe_u32 v6, v1, 1, 3")
    for nt in range(4):
        a(f"v_cmp_eq_u32 vcc, {nt}, v6")
        a("s_nop 1")
        a(f"v_cndmask_b32 v{24+nt}, v4, v5, vcc")
    a("s_waitcnt lgkmcnt(0)")
    BX = 64
    for t in range(8):
        for nt in range(4):
            r = BX + (t * 4 + nt) * 4
            a(f"ds_read_b128 v[{r}:{r+3}], v{24+nt} offset:{t*64}")
        a("s_waitcnt lgkmcnt(8)")
    a("v_lshrrev_b32 v4, 2, v1")
    a("v_lshlrev_b32 v4, 7, v4")
    a("v_and_b32 v5, 3, v1")
    a("v_lshl_add_u32 v4, v5, 3, v4")
    a("v_bfe_u32 v5, v1, 3, 2")
    for nt in range(4):
        a(f"v_xor_b32 v6, {nt}, v5")
        a(f"v_lshl_add_u32 v{28+nt}, v6, 5, v4")
    a("v_and_b32 v4, 1, v1")
    a("v_bfe_u32 v5, v1, 1, 2")
    a("v_lshrrev_b32 v6, 4, v1")
    a("v_lshlrev_b32 v5, 6, v5")
    a("v_lshl_add_u32 v5, v6, 4, v5")
    a("v_lshl_add_u32 v32, v4, 16, v5")
    a(f"v_mul_u32_u24 v6, {4*3584*4}, v4")
    a("v_add_u32 v33, v6, v5")
    a("s_lshr_b32 s38, s27, 2")
    a("s_lshl_b32 s30, s26, 3")
    a("s_add_u32 s30, s30, s38")
    a("s_lshl_b32 s30, s30, 8")
    a("s_lshl_b32 s31, s36, 14")
    a("s_add_u32 s30, s30, s31")
    a(f"s_add_u32 s30, s30, {WS_Q}")
    a("v_add_u32 v32, s30, v32")
    a("s_mul_i32 s30, s26, 7")
    a("s_add_u32 s30, s30, s38")
    a("s_lshl_b32 s30, s30, 8")
    a(f"s_mul_i32 s31, s36, {3584*4}")
    a("s_add_u32 s30, s30, s31")
    a(f"s_add_u32 s30, s30, {WS_H}")
    a("v_add_u32 v33, s30, v33")
    a("v_mov_b32 v34, s29")
    a(f"s_mov_b32 s39, {0xFFFFFFFF ^ TAGMASK}")
    a("s_mov_b32 s46, 0x00ff00ff")
    a("s_mov_b32 s47, 0x00ff00ff")
    a("s_waitcnt lgkmcnt(0)")

    def proj(seg, vaddr, freeflag):
        for t in range(8):
            if t % 2 == 0:
                lds_wait_ge(F_LANDED, segstart[seg] + 4 * (t + 2))
            wb = 192 + (t & 1) * 16
            for nt in range(4):
                r = wb + nt * 4
                a(f"ds_read_b64_tr_b16 v[{r}:{r+1}], v{28+nt} offset:{SLOT_A + t*4096}")
                a(f"ds_read_b64_tr_b16 v[{r+2}:{r+3}], v{28+nt} offset:{SLOT_A + t*4096 + 2048}")
            for nt in range(4):
                r = wb + nt * 4
                a(f"s_waitcnt lgkmcnt({6 - 2*nt})")
                bx = BX + (t * 4 + nt) * 4
                c = "0" if (t == 0 and nt == 0) else "v[40:43]"
                a(f"v_mfma_f32_16x16x32_bf16 v[40:43], v[{r}:{r+3}], v[{bx}:{bx+3}], {c}")
        if freeflag:
            lds_set(freeflag, 1)
        a("s_nop 7")
        for i in range(4):
            a(f"v_and_or_b32 v{44+i}, v{40+i}, s39, v34")
        a("s_mov_b64 exec, s[46:47]")
        a(f"global_store_dwordx4 {vaddr}, v[44:47], s[24:25] sc1")
        a("s_mov_b64 exec, -1")

    proj("wq", "v32", F_FREEA)
    stamp(1)
    a("s_cmp_ge_u32 s27, 28")
    a("s_cbranch_scc1 L_FIN")
    proj("w1", "v33", None)
    stamp(2)
    a.label("L_FIN")
    a("s_lshl_b32 s30, s26, 5")
    a("s_add_u32 s30, s30, s27")
    a("s_lshl_b32 s30, s30, 10")
    a(f"s_add_u32 s30, s30, {WS_S}")
    a("v_lshlrev_b32 v4, 4, v1")
    a("v_add_u32 v4, s30, v4")
    a(f"v_add_u32 v5, {WS_F - WS_S}, v4")
    lds_wait_ge(F_LANDED, NLOADS)
    stamp(3)
    a("s_mov_b32 s34, 0")
    a.label("L_FINP")
    a("global_load_dwordx4 v[8:11], v4, s[24:25] sc1")
    a("global_load_dwordx4 v[12:15], v5, s[24:25] sc1")
    a("s_add_u32 s34, s34, 1")
    a("s_waitcnt vmcnt(0)")
    a("v_xor_b32 v16, v8, v34")
    for r in (9, 10, 11, 12, 13, 14, 15):
        a(f"v_bitop3_b32 v16, v{r}, v34, v16 bitop3:0xbe")
    a(f"v_and_b32 v16, {TAGMASK}, v16")
    a("v_cmp_ne_u32 vcc, 0, v16")
    a(f"s_cmp_gt_u32 s34, {SPIN_MAX}")
    a("s_cbranch_scc1 L_FIND")
    a("s_cbranch_vccnz L_FINP")
    a.label("L_FIND")
    stamp(4)
    for r in range(8, 16):
        a(f"v_add_f32_dpp v{r}, v{r}, v{r} row_ror:2 row_mask:0xf bank_mask:0xf")
    for r in range(8, 16):
        a(f"v_add_f32_dpp v{r}, v{r}, v{r} row_ror:4 row_mask:0xf bank_mask:0xf")
    for r in range(8, 16):
        a(f"v_add_f32_dpp v{r}, v{r}, v{r} row_ror:8 row_mask:0xf bank_mask:0xf")
    for r in range(8, 16):
        a(f"v_mov_b32 v{r+8}, v{r}")
    a("s_nop 1")
    for r in range(8, 16):
        a(f"v_permlane16_swap_b32 v{r}, v{r+8}")
    for r in range(8, 16):
        a(f"v_add_f32 v{r}, v{r}, v{r+8}")
    for r in range(8, 16):
        a(f"v_mov_b32 v{r+8}, v{r}")
    a("s_nop 1")
    for r in range(8, 16):
        a(f"v_permlane32_swap_b32 v{r}, v{r+8}")
    for r in range(8, 16):
        a(f"v_add_f32 v{r}, v{r}, v{r+8}")
    a("s_nop 1")
    for r in range(8, 16):
        a(f"v_mov_b32_dpp v{r+8}, v{r} quad_perm:[1,0,3,2] row_mask:0xf bank_mask:0xf")
    a("v_bfe_u32 v24, v1, 2, 1")
    a("v_and_b32 v25, 1, v1")
    a("v_cmp_eq_u32 vcc, v24, v25")
    a("s_nop 1")
    for r in range(8, 16):
        a(f"v_cndmask_b32 v{r}, v{r+8}, v{r}, vcc")
    a("v_and_b32 v24, 3, v1")
    a("v_cmp_eq_u32 vcc, 1, v24")
    a("s_nop 1")
    a("v_cndmask_b32 v8, v8, v9, vcc")
    a("v_cndmask_b32 v12, v12, v13, vcc")
    a("v_cmp_eq_u32 vcc, 2, v24")
    a("s_nop 1")
    a("v_cndmask_b32 v8, v8, v10, vcc")
    a("v_cndmask_b32 v12, v12, v14, vcc")
    a("v_cmp_eq_u32 vcc, 3, v24")
    a("s_nop 1")
    a("v_cndmask_b32 v8, v8, v11, vcc")
    a("v_cndmask_b32 v12, v12, v15, vcc")
    a("v_cvt_pk_bf16_f32 v9, v8, v12")
    a("v_lshlrev_b32 v8, 16, v9")
    a("v_and_b32 v12, 0xffff0000, v9")
    a("v_mul_f32 v10, 0xbfb8aa3b, v12")
    a("v_exp_f32 v10, v10")
    a("s_nop 0")
    a("v_add_f32 v10, 1.0, v10")
    a("v_rcp_f32 v10, v10")
    a("s_nop 0")
    a("v_mul_f32 v10, v12, v10")
    a("v_cvt_pk_bf16_f32 v10, v10, v10")
    a("v_lshlrev_b32 v10, 16, v10")
    a("v_mul_f32 v10, v8, v10")
    a("v_cvt_pk_bf16_f32 v10, v10, v10")
    a("v_lshlrev_b32 v10, 16, v10")
    a("v_lshlrev_b32 v11, 16, v241")
    a("v_add_f32 v10, v11, v10")
    a("v_cvt_pk_bf16_f32 v10, v10, v10")
    a("s_mov_b64 exec, 0xff")
    a("global_store_short v240, v10, s[20:21]")
    a("s_cmp_lg_u32 s2, 0")
    a("s_cbranch_scc1 L_PEND")
    a("s_mov_b64 exec, 1")
    a("v_mov_b32 v4, 0")
    a("v_mov_b32 v5, s37")
    a(f"global_store_dword v4, v5, s[24:25] offset:{WS_EPOCH}")
    a.label("L_PEND")
    a("s_mov_b64 exec, -1")
    stamp(5)
    ts_out()
    a("s_endpgm")

    a.label("L_ATT")
    a("s_waitcnt lgkmcnt(0)")
    a("v_and_b32 v3, 7, v1")
    a("v_lshlrev_b32 v3, 9, v3")
    a("v_bfe_u32 v4, v1, 3, 1")
    a("v_lshl_add_u32 v3, v4, 8, v3")
    a("v_lshrrev_b32 v4, 4, v1")
    a("v_lshl_add_u32 v3, v4, 5, v3")
    a("s_lshr_b32 s30, s26, 2")
    a("s_lshl_b32 s30, s30, 16")
    a("s_and_b32 s31, s26, 3")
    a("s_lshl_b32 s31, s31, 12")
    a("s_add_u32 s30, s30, s31")
    a(f"s_add_u32 s30, s30, {WS_Q}")
    a("v_add_u32 v8, s30, v3")
    for ks in range(1, 4):
        a(f"v_add_u32 v{8+ks}, {ks*16384}, v8")
    a("v_and_b32 v5, 15, v1")
    for u in range(4):
        a(f"v_add_u32 v6, {4*u}, v4")
        a("v_xor_b32 v6, v6, v5")
        a("v_lshlrev_b32 v6, 4, v6")
        a(f"v_lshl_add_u32 v{12+u}, v5, 8, v6")
    a("v_lshrrev_b32 v5, 2, v1")
    a("v_and_b32 v6, 3, v1")
    a("v_lshlrev_b32 v6, 3, v6")
    a("v_lshl_add_u32 v6, v5, 8, v6")
    a(f"v_add_u32 v6, {SLOT_C}, v6")
    a("v_and_b32 v5, 7, v5")
    for dt in range(8):
        a(f"v_xor_b32 v7, {dt}, v5")
        a(f"v_lshl_add_u32 v{16+dt}, v7, 5, v6")
    a("v_and_b32 v3, 7, v1")
    a("v_lshlrev_b32 v24, 14, v3")
    a("v_lshl_add_u32 v24, v4, 4, v24")
    a("s_lshl_b32 s30, s26, 17")
    a("s_lshl_b32 s31, s27, 9")
    a("s_add_u32 s30, s30, s31")
    a(f"s_add_u32 s30, s30, {WS_O}")
    a("v_add_u32 v24, s30, v24")
    a("v_lshlrev_b32 v25, 8, v3")
    a("s_lshl_b32 s30, s26, 11")
    a("s_lshl_b32 s31, s27, 3")
    a("s_add_u32 s30, s30, s31")
    a(f"s_add_u32 s30, s30, {WS_ML}")
    a("v_add_u32 v25, s30, v25")
    for r in range(96, 128):
        a(f"v_mov_b32 v{r}, 0")
    get_tag()
    a("v_mov_b32 v26, s29")
    a(f"s_mov_b32 s39, {0xFFFFFFFF ^ TAGMASK}")
    lds_wait_ge(F_LANDED, segstart["k"] + 32)
    stamp(1)
    a("s_mov_b32 s34, 0")
    a.label("L_QP")
    for ks in range(4):
        for uu in range(2):
            for hh in range(2):
                r = 32 + ((ks * 2 + uu) * 2 + hh) * 4
                a(f"global_load_dwordx4 v[{r}:{r+3}], v{8+ks}, s[24:25] offset:{uu*128 + hh*16} sc1")
    a("s_add_u32 s34, s34, 1")
    a("s_waitcnt vmcnt(0)")
    a("v_xor_b32 v27, v32, v26")
    for r in range(33, 96):
        a(f"v_bitop3_b32 v27, v{r}, v26, v27 bitop3:0xbe")
    a(f"v_and_b32 v27, {TAGMASK}, v27")
    a("v_cmp_ne_u32 vcc, 0, v27")
    a(f"s_cmp_gt_u32 s34, {SPIN_MAX}")
    a("s_cbranch_scc1 L_QD")
    a("s_cbranch_vccnz L_QP")
    a.label("L_QD")
    stamp(2)
    for i in range(16):
        a(f"v_add_f32 v{32+i}, v{32+i}, v{48+i}")
        a(f"v_add_f32 v{64+i}, v{64+i}, v{80+i}")
    for i in range(16):
        a(f"v_add_f32 v{32+i}, v{32+i}, v{64+i}")
    for i in range(8):
        a(f"v_cvt_pk_bf16_f32 v{48+i}, v{32+2*i}, v{33+2*i}")
    a("s_nop 1")
    for uu in range(2):
        for j in range(4):
            src = 48 + uu * 4 + j
            a(f"v_mov_b32_dpp v{96+uu*4+j}, v{src} quad_perm:[0,1,2,3] row_mask:0xf bank_mask:0x3")
            a(f"v_mov_b32_dpp v{96+(2+uu)*4+j}, v{src} row_ror:8 row_mask:0xf bank_mask:0x3")
            a(f"v_mov_b32_dpp v{112+uu*4+j}, v{src} row_ror:8 row_mask:0xf bank_mask:0xc")
            a(f"v_mov_b32_dpp v{112+(2+uu)*4+j}, v{src} quad_perm:[0,1,2,3] row_mask:0xf bank_mask:0xc")
    def kread(T, T4):
        for u in range(4):
            r = 128 + (T4 * 4 + u) * 4
            a(f"ds_read_b128 v[{r}:{r+3}], v{12+u} offset:{SLOT_B + T*4096}")
    def kmfma(half, T4):
        for u in range(4):
            r = 128 + (T4 * 4 + u) * 4
            q = (96 if half == 0 else 112) + u * 4
            d = 32 + T4 * 4
            c = "0" if (half == 0 and u == 0) else f"v[{d}:{d+3}]"
            a(f"v_mfma_f32_16x16x32_bf16 v[{d}:{d+3}], v[{r}:{r+3}], v[{q}:{q+3}], {c}")
    for half in range(2):
        for T4 in range(3):
            kread(half * 4 + T4, T4)
        a("s_waitcnt lgkmcnt(8)")
        kmfma(half, 0)
        kread(half * 4 + 3, 3)
        a("s_waitcnt lgkmcnt(8)")
        kmfma(half, 1)
        a("s_waitcnt lgkmcnt(4)")
        kmfma(half, 2)
        a("s_waitcnt lgkmcnt(0)")
        kmfma(half, 3)
    lds_set(F_FREEB, 1)
    a("s_nop 7")
    a("s_mov_b32 s30, 0x3db504f3")
    for i in range(0, 16, 2):
        a(f"v_cvt_pk_bf16_f32 v48, v{32+i}, v{33+i}")
        a(f"v_lshlrev_b32 v{32+i}, 16, v48")
        a(f"v_and_b32 v{33+i}, 0xffff0000, v48")
        a(f"v_mul_f32 v{32+i}, s30, v{32+i}")
        a(f"v_mul_f32 v{33+i}, s30, v{33+i}")
        a(f"v_cvt_pk_bf16_f32 v48, v{32+i}, v{33+i}")
        a(f"v_lshlrev_b32 v{32+i}, 16, v48")
        a(f"v_and_b32 v{33+i}, 0xffff0000, v48")
    a("v_max3_f32 v48, v32, v33, v34")
    for i in range(3, 15, 2):
        a(f"v_max3_f32 v48, v48, v{32+i}, v{33+i}")
    a("v_max_f32 v48, v48, v47")
    a("s_nop 1")
    a("v_max_f32_dpp v48, v48, v48 row_ror:8 row_mask:0xf bank_mask:0xf")
    a("v_mov_b32 v49, v48")
    a("s_nop 1")
    a("v_permlane16_swap_b32 v48, v49")
    a("v_max_f32 v48, v48, v49")
    a("v_mov_b32 v49, v48")
    a("s_nop 1")
    a("v_permlane32_swap_b32 v48, v49")
    a("v_max_f32 v48, v48, v49")
    a("s_mov_b32 s31, 0x3fb8aa3b")
    for i in range(16):
        a(f"v_sub_f32 v{32+i}, v{32+i}, v48")
        a(f"v_mul_f32 v{32+i}, s31, v{32+i}")
        a(f"v_exp_f32 v{32+i}, v{32+i}")
    a("s_nop 0")
    a("v_add_f32 v49, v32, v33")
    for i in range(2, 16):
        a(f"v_add_f32 v49, v49, v{32+i}")
    for i in range(8):
        a(f"v_cvt_pk_bf16_f32 v{52+i}, v{32+2*i}, v{33+2*i}")
    a("v_add_f32_dpp v49, v49, v49 row_ror:8 row_mask:0xf bank_mask:0xf")
    a("s_nop 0")
    for i in range(8):
        a(f"v_mov_b32_dpp v{60+i}, v{52+i} row_ror:8 row_mask:0xf bank_mask:0xf")
    a("v_mov_b32 v50, v49")
    a("s_nop 1")
    a("v_permlane16_swap_b32 v49, v50")
    a("v_add_f32 v49, v49, v50")
    a("v_mov_b32 v50, v49")
    a("s_nop 1")
    a("v_permlane32_swap_b32 v49, v50")
    a("v_add_f32 v49, v49, v50")
    a("v_or_b32 v48, v48, v26")
    a("v_and_or_b32 v49, v49, s39, v26")
    stamp(3)
    lds_wait_ge(F_LANDED, segstart["v"] + 32)
    stamp(4)
    for half in range(2):
        for dd in range(4):
            dt = half * 4 + dd
            for up in range(4):
                r = 128 + (dd * 4 + up) * 4
                a(f"ds_read_b64_tr_b16 v[{r}:{r+1}], v{16+dt} offset:{up*8192}")
                a(f"ds_read_b64_tr_b16 v[{r+2}:{r+3}], v{16+dt} offset:{up*8192 + 4096}")
            if dd >= 1:
                a("s_waitcnt lgkmcnt(8)")
                for up in range(4):
                    r = 128 + ((dd - 1) * 4 + up) * 4
                    d = 96 + (dt - 1) * 4
                    p = 52 + up * 4
                    c = "0" if up == 0 else f"v[{d}:{d+3}]"
                    a(f"v_mfma_f32_16x16x32_bf16 v[{d}:{d+3}], v[{r}:{r+3}], v[{p}:{p+3}], {c}")
        a("s_waitcnt lgkmcnt(0)")
        for up in range(4):
            r = 128 + (3 * 4 + up) * 4
            d = 96 + (half * 4 + 3) * 4
            p = 52 + up * 4
            c = "0" if up == 0 else f"v[{d}:{d+3}]"
            a(f"v_mfma_f32_16x16x32_bf16 v[{d}:{d+3}], v[{r}:{r+3}], v[{p}:{p+3}], {c}")
    a("s_mov_b32 s46, 0x00ff00ff")
    a("s_mov_b32 s47, 0x00ff00ff")
    a("s_nop 7")
    for i in range(32):
        a(f"v_and_or_b32 v{96+i}, v{96+i}, s39, v26")
    a("s_mov_b64 exec, s[46:47]")
    for dt in range(8):
        a(f"global_store_dwordx4 v24, v[{96+dt*4}:{99+dt*4}], s[24:25] offset:{dt*64} sc1")
    a("s_mov_b64 exec, 0xff")
    a("global_store_dwordx2 v25, v[48:49], s[24:25] sc1")
    a("s_mov_b64 exec, -1")
    stamp(5)
    ts_out()
    a("s_endpgm")

    a.label("L_OG")
    a("s_waitcnt lgkmcnt(0)")
    a("s_sub_u32 s36, s28, 3")
    a("v_lshrrev_b32 v3, 5, v1")
    a("v_lshlrev_b32 v3, 13, v3")
    a("v_and_b32 v4, 31, v1")
    a("v_lshl_add_u32 v3, v4, 4, v3")
    a("s_lshl_b32 s30, s36, 5")
    a("s_add_u32 s30, s30, s27")
    a("s_lshl_b32 s31, s30, 14")
    a(f"s_add_u32 s31, s31, {WS_O}")
    a("v_add_u32 v8, s31, v3")
    a("v_add_u32 v9, 4096, v8")
    a("s_lshl_b32 s31, s30, 8")
    a(f"s_add_u32 s31, s31, {WS_ML}")
    a("v_lshlrev_b32 v10, 3, v4")
    a("v_add_u32 v10, s31, v10")
    a("s_lshl_b32 s31, s36, 7")
    a(f"s_add_u32 s31, s31, {WB}")
    a("v_lshlrev_b32 v11, 2, v4")
    a("v_add_u32 v11, s31, v11")
    a("v_lshrrev_b32 v12, 5, v1")
    a("v_lshlrev_b32 v12, 6, v12")
    a("v_add_u32 v12, s31, v12")
    a("v_lshrrev_b32 v5, 3, v4")
    a("v_lshlrev_b32 v5, 6, v5")
    a("v_and_b32 v6, 3, v4")
    a("v_lshl_add_u32 v5, v6, 4, v5")
    a("v_bfe_u32 v6, v4, 2, 1")
    a("v_lshl_add_u32 v5, v6, 3, v5")
    a(f"s_mul_i32 s31, s36, {OB_BS}")
    a(f"s_add_u32 s31, s31, {OB}")
    a("v_add_u32 v13, s31, v5")
    get_tag()
    a("v_mov_b32 v26, s29")
    a(f"s_mov_b32 s39, {0xFFFFFFFF ^ TAGMASK}")
    lds_wait_ge(F_LANDED, segstart["wo"] + 8)
    stamp(1)
    a("s_mov_b32 s34, 0")
    a.label("L_OP")
    a("global_load_dwordx2 v[14:15], v10, s[24:25] sc1")
    for i in range(16):
        va = "v8" if i < 8 else "v9"
        a(f"global_load_dwordx4 v[{32+4*i}:{35+4*i}], {va}, s[24:25] offset:{(i&7)*512} sc1")
    a("s_add_u32 s34, s34, 1")
    a("s_waitcnt vmcnt(0)")
    a("v_xor_b32 v27, v14, v26")
    a("v_bitop3_b32 v27, v15, v26, v27 bitop3:0xbe")
    for r in range(32, 96):
        a(f"v_bitop3_b32 v27, v{r}, v26, v27 bitop3:0xbe")
    a(f"v_and_b32 v27, {TAGMASK}, v27")
    a("v_cmp_ne_u32 vcc, 0, v27")
    a(f"s_cmp_gt_u32 s34, {SPIN_MAX}")
    a("s_cbranch_scc1 L_OD")
    a("s_cbranch_vccnz L_OP")
    a.label("L_OD")
    stamp(2)
    a("v_and_b32 v14, 0xffff0000, v14")
    a("v_mov_b32 v16, v14")
    for mod in ("quad_perm:[1,0,3,2]", "quad_perm:[2,3,0,1]", "row_half_mirror", "row_mirror"):
        a("s_nop 1")
        a(f"v_max_f32_dpp v16, v16, v16 {mod} row_mask:0xf bank_mask:0xf")
    a("v_mov_b32 v17, v16")
    a("s_nop 1")
    a("v_permlane16_swap_b32 v16, v17")
    a("v_max_f32 v16, v16, v17")
    a("v_sub_f32 v14, v14, v16")
    a("v_mul_f32 v14, 0x3fb8aa3b, v14")
    a("v_exp_f32 v14, v14")
    a("s_nop 0")
    a("v_mul_f32 v16, v14, v15")
    for mod in ("quad_perm:[1,0,3,2]", "quad_perm:[2,3,0,1]", "row_half_mirror", "row_mirror"):
        a("s_nop 1")
        a(f"v_add_f32_dpp v16, v16, v16 {mod} row_mask:0xf bank_mask:0xf")
    a("v_mov_b32 v17, v16")
    a("s_nop 1")
    a("v_permlane16_swap_b32 v16, v17")
    a("v_add_f32 v16, v16, v17")
    a("v_rcp_f32 v16, v16")
    a("s_nop 0")
    a("v_mul_f32 v14, v14, v16")
    a("ds_write_b32 v11, v14")
    a("s_waitcnt lgkmcnt(0)")
    for i in range(4):
        a(f"ds_read_b128 v[{96+4*i}:{99+4*i}], v12 offset:{16*i}")
    a("s_waitcnt lgkmcnt(0)")
    for j in range(4):
        a(f"v_mul_f32 v{16+j}, v96, v{32+j}")
    for i in range(1, 16):
        for j in range(4):
            a(f"v_fmac_f32 v{16+j}, v{96+i}, v{32+4*i+j}")
    for j in range(4):
        a(f"v_mov_b32 v{20+j}, v{16+j}")
    a("s_nop 1")
    for j in range(4):
        a(f"v_permlane32_swap_b32 v{16+j}, v{20+j}")
    for j in range(4):
        a(f"v_add_f32 v{16+j}, v{16+j}, v{20+j}")
    a("v_cvt_pk_bf16_f32 v20, v16, v17")
    a("v_cvt_pk_bf16_f32 v21, v18, v19")
    a("ds_write_b64 v13, v[20:21]")
    a("s_waitcnt lgkmcnt(0)")
    a("s_cmp_eq_u32 s36, 0")
    a("s_cbranch_scc1 L_WO")
    lds_set(F_O1, 1)
    stamp(3)
    ts_out()
    a("s_endpgm")

    def gemv_setup(vec, slot, wsbase):
        a("v_lshrrev_b32 v4, 4, v1")
        a("v_lshlrev_b32 v4, 4, v4")
        a("v_and_b32 v5, 1, v1")
        a(f"v_mul_u32_u24 v5, {OB_BS}, v5")
        a(f"v_add_u32 v5, {vec}, v5")
        a("v_add_u32 v5, v5, v4")
        a(f"v_add_u32 v4, {ZR}, v4")
        a("v_bfe_u32 v6, v1, 1, 3")
        for nt in range(8):
            a(f"v_cmp_eq_u32 vcc, {2*(nt&3) + (nt>>2)}, v6")
            a("s_nop 1")
            a(f"v_cndmask_b32 v{16+nt}, v4, v5, vcc")
        a("v_lshrrev_b32 v5, 2, v1")
        a("v_and_b32 v6, 3, v1")
        a("v_lshlrev_b32 v6, 3, v6")
        a("v_lshl_add_u32 v6, v5, 8, v6")
        a(f"v_add_u32 v6, {slot}, v6")
        a("v_and_b32 v5, 7, v5")
        for nt in range(8):
            a(f"v_xor_b32 v7, {nt}, v5")
            a(f"v_lshl_add_u32 v{240+nt}, v7, 5, v6")
        a("v_lshrrev_b32 v5, 2, v1")
        a("v_lshlrev_b32 v5, 10, v5")
        a("v_and_b32 v6, 3, v1")
        a("v_lshl_add_u32 v5, v6, 3, v5")
        a("s_lshl_b32 s30, s26, 15")
        a("s_lshl_b32 s31, s27, 5")
        a("s_add_u32 s30, s30, s31")
        a(f"s_add_u32 s30, s30, {wsbase}")
        a("v_add_u32 v248, s30, v5")
        a("v_add_u32 v249, 16384, v248")

    def gemv_run(seg, halfstep_last):
        first = True
        for u in range(4):
            half = halfstep_last and u == 3
            need = segstart[seg] + (8 * u + (4 if half else 8))
            lds_wait_ge(F_LANDED, need)
            wb = 32 + (u & 1) * 32
            ab = 96 + (u & 1) * 32
            for g2 in range(2):
                for nt in range(g2 * 4, g2 * 4 + 4):
                    a(f"ds_read_b64_tr_b16 v[{wb+nt*4}:{wb+nt*4+1}], v{240+nt} offset:{u*8192}")
                    if not half:
                        a(f"ds_read_b64_tr_b16 v[{wb+nt*4+2}:{wb+nt*4+3}], v{240+nt} offset:{u*8192+4096}")
                    a(f"ds_read_b128 v[{ab+nt*4}:{ab+nt*4+3}], v{16+nt} offset:{u*64}")
                a("s_waitcnt lgkmcnt(0)")
                for nt in range(g2 * 4, g2 * 4 + 4):
                    c = "0" if first else "v[28:31]"
                    first = False
                    if half:
                        a(f"v_mfma_f32_16x16x16_bf16 v[28:31], v[{ab+nt*4}:{ab+nt*4+1}], v[{wb+nt*4}:{wb+nt*4+1}], {c}")
                    else:
                        a(f"v_mfma_f32_16x16x32_bf16 v[28:31], v[{ab+nt*4}:{ab+nt*4+3}], v[{wb+nt*4}:{wb+nt*4+3}], {c}")
        a("s_nop 7")
        for i in range(4):
            a(f"v_and_or_b32 v{28+i}, v{28+i}, s39, v26")
        a("global_store_dwordx2 v248, v[28:29], s[24:25] sc1")
        a("global_store_dwordx2 v249, v[30:31], s[24:25] sc1")

    a.label("L_WO")
    gemv_setup(OB, SLOT_D, WS_S)
    lds_wait_ge(F_O1, 1)
    stamp(3)
    gemv_run("wo", False)
    stamp(4)
    ts_out()
    a("s_endpgm")

    a.label("L_W2")
    a("s_waitcnt lgkmcnt(0)")
    gemv_setup(HB, SLOT_B, WS_F)
    a("v_lshrrev_b32 v3, 5, v1")
    a(f"v_mul_u32_u24 v3, {4*3584*4}, v3")
    a("v_and_b32 v4, 31, v1")
    a("v_min_u32 v5, 27, v4")
    a("v_lshl_add_u32 v3, v5, 4, v3")
    a(f"s_mul_i32 s30, s27, {112*4}")
    a(f"s_add_u32 s30, s30, {WS_H}")
    a("v_add_u32 v8, s30, v3")
    for ks in range(1, 4):
        a(f"v_add_u32 v{8+ks}, {ks*3584*4}, v8")
    a("v_lshrrev_b32 v5, 3, v4")
    a("v_lshlrev_b32 v5, 6, v5")
    a("v_and_b32 v6, 3, v4")
    a("v_lshl_add_u32 v5, v6, 4, v5")
    a("v_bfe_u32 v6, v4, 2, 1")
    a("v_lshl_add_u32 v5, v6, 3, v5")
    a("v_lshrrev_b32 v6, 5, v1")
    a(f"v_mul_u32_u24 v6, {OB_BS}, v6")
    a(f"v_add_u32 v6, {HB}, v6")
    a("v_add_u32 v13, v5, v6")
    get_tag()
    a("v_mov_b32 v26, s29")
    a(f"s_mov_b32 s39, {0xFFFFFFFF ^ TAGMASK}")
    lds_wait_ge(F_LANDED, min(NLOADS, segstart["w1"] + 32 + 16))
    stamp(1)
    a("s_mov_b32 s34, 0")
    a.label("L_HP")
    for ks in range(4):
        a(f"global_load_dwordx4 v[{32+4*ks}:{35+4*ks}], v{8+ks}, s[24:25] sc1")
    a("s_add_u32 s34, s34, 1")
    a("s_waitcnt vmcnt(0)")
    a("v_xor_b32 v27, v32, v26")
    for r in range(33, 48):
        a(f"v_bitop3_b32 v27, v{r}, v26, v27 bitop3:0xbe")
    a(f"v_and_b32 v27, {TAGMASK}, v27")
    a("v_cmp_ne_u32 vcc, 0, v27")
    a(f"s_cmp_gt_u32 s34, {SPIN_MAX}")
    a("s_cbranch_scc1 L_HD")
    a("s_cbranch_vccnz L_HP")
    a.label("L_HD")
    stamp(2)
    for j in range(4):
        a(f"v_add_f32 v{32+j}, v{32+j}, v{36+j}")
        a(f"v_add_f32 v{40+j}, v{40+j}, v{44+j}")
    for j in range(4):
        a(f"v_add_f32 v{32+j}, v{32+j}, v{40+j}")
    for j in range(4):
        a(f"v_max_f32 v{32+j}, 0, v{32+j}")
    a("v_cvt_pk_bf16_f32 v36, v32, v33")
    a("v_cvt_pk_bf16_f32 v37, v34, v35")
    a("ds_write_b64 v13, v[36:37]")
    a("s_waitcnt lgkmcnt(0)")
    gemv_run("w2", True)
    stamp(3)
    ts_out()
    a.label("L_end")
    a("s_endpgm")
    open(fn, "w").write(wrap_single(a.text(), 256, 384, LDS_TOTAL, 256))


if __name__ == "__main__":
    gen("k1.s", ts=False)
    gen("k1_ts.s", ts=True)
    gen("k1_dbg.s", ts=True, dbg=True)
```

```python
import sys
from common import *

S0 = 0
S1 = 32768
S2 = 65536
S3 = 98304
MISC = 131072
XN = MISC
XN_BS = 576
QL = XN + 2 * XN_BS
QL_RS = 272
VB = QL + 8 * QL_RS
WB = VB + 2 * XN_BS
MX = WB + 256
LX = MX + 128
PL = LX + 128
ZR = PL + 2048
ZR_SZ = 320
FL = ZR + ZR_SZ
F_LANDED = FL
F_TAG = FL + 256
F_XN = FL + 512
F_FREE0 = FL + 516
F_FREE1 = FL + 520
F_Q = FL + 524
F_MX = FL + 528
F_P = FL + 532
F_OP = FL + 536
F_VB = FL + 540
F_SP = FL + 544
F_CO = FL + 548
LDS_TOTAL = FL + 576

WS_EPOCH = 0
WS_XC = 0x8000
WS_Q = 0x10000
WS_H = 0x30000
WS_ML = 0x50000
WS_O2 = 0x58000
WS_S = 0x60000
WS_O = 0x100000
WS_TS = 0x8000000

TAGMASK = 0xFF
SPIN_MAX = 200000
NW = 11
NTS = 8
COSH = 3


def gen(fn, D=24, Dv=40, Dw=40, ts=False, qstart=72, hstart=164, mlstart=152, xcstart=48, fast=True, dbg=False, pre=8,
        aprio=2, ldflag="nt"):
    a = Asm()
    uid = [0]

    def L(prefix):
        uid[0] += 1
        return f"L_{prefix}_{uid[0]}"

    def stamp(i):
        if ts:
            a(f"s_memrealtime s[{84+2*i}:{85+2*i}]")

    VT, VA = "v126", "v127"

    def lds_wait_ge(flag, val, vtmp=VT, vaddr=VA, slp=0):
        lab = L("w")
        done = L("wd")
        a(f"v_mov_b32 {vaddr}, {flag}")
        a("s_mov_b32 s34, 0")
        a.label(lab)
        a(f"ds_read_b32 {vtmp}, {vaddr}")
        a("s_add_u32 s34, s34, 1")
        a("s_waitcnt lgkmcnt(0)")
        a(f"v_readfirstlane_b32 s35, {vtmp}")
        a(f"s_cmp_ge_u32 s35, {val}")
        a(f"s_cbranch_scc1 {done}")
        if slp:
            a(f"s_sleep {slp}")
        a(f"s_cmp_lt_u32 s34, {SPIN_MAX}")
        a(f"s_cbranch_scc1 {lab}")
        a.label(done)

    def arrive(flag):
        a(f"v_mov_b32 {VA}, {flag}")
        a(f"v_mov_b32 {VT}, 1")
        a("s_mov_b64 exec, 1")
        a(f"ds_add_u32 {VA}, {VT}")
        a("s_mov_b64 exec, -1")

    def validate(regs, vtag, vacc):
        a(f"v_xor_b32 {vacc}, v{regs[0]}, {vtag}")
        for r in regs[1:]:
            a(f"v_bitop3_b32 {vacc}, v{r}, {vtag}, {vacc} bitop3:0xbe")

    def poll(name, loads, regs, vtag, vacc, slp=0):
        a("s_mov_b32 s34, 0")
        if slp:
            a(f"s_branch L_{name}S")
        a.label(f"L_{name}P")
        if slp:
            a(f"s_sleep {slp}")
            a.label(f"L_{name}S")
        for l in loads:
            a(l)
        a("s_add_u32 s34, s34, 1")
        a("s_waitcnt vmcnt(0)")
        validate(regs, vtag, vacc)
        a(f"v_and_b32 {vacc}, {TAGMASK}, {vacc}")
        a(f"v_cmp_ne_u32 vcc, 0, {vacc}")
        a(f"s_cmp_gt_u32 s34, {SPIN_MAX}")
        a(f"s_cbranch_scc1 L_{name}D")
        a(f"s_cbranch_vccnz L_{name}P")
        a.label(f"L_{name}D")

    def store2(instr):
        l1 = L("st")
        l2 = L("se")
        a("s_cmp_eq_u32 s53, 1")
        a(f"s_cbranch_scc1 {l1}")
        a(instr + " sc1")
        a(f"s_branch {l2}")
        a.label(l1)
        a(instr)
        a.label(l2)

    def get_tag():
        lds_wait_ge(F_TAG, 1)
        a(f"s_and_b32 s29, s35, {TAGMASK}")
        a("v_mov_b32 v99, s29")
        a(f"s_mov_b32 s39, {0xFFFFFFFF ^ TAGMASK}")

    def cg1(dst, second):
        a(f"s_sub_u32 {dst}, s37, 1")
        a("s_cmp_gt_u32 s37, 3")
        a(f"s_subb_u32 {dst}, {dst}, 0")
        if second:
            a(f"s_add_u32 {dst}, {dst}, 1")
        a("s_add_u32 s31, s26, 3")
        a("s_and_b32 s31, s31, 7")
        a("s_cmp_eq_u32 s31, 7")
        a("s_cselect_b32 s31, 2, s31")
        a(f"s_cmp_eq_u32 {dst}, s31")
        a(f"s_cselect_b32 s30, 2, {dst}")
        a(f"s_cmp_eq_u32 {dst}, 2")
        a(f"s_cselect_b32 {dst}, s31, s30")
        a("s_mul_i32 s31, s26, 7")
        a(f"s_add_u32 {dst}, {dst}, s31")

    SEG_WQ, SEG_K, SEG_M, SEG_V, SEG_W2 = 0, 32, 64, 128, 160

    a.label("L_start")
    if ts:
        a("s_memrealtime s[84:85]")
    a("s_cmp_ge_u32 s2, 256")
    a("s_cbranch_scc1 L_end")
    a("s_load_dwordx16 s[4:19], s[0:1], 0")
    a("s_load_dwordx4 s[20:23], s[0:1], 64")
    a("s_load_dwordx2 s[24:25], s[0:1], 80")
    a("v_lshrrev_b32 v2, 6, v0")
    a("v_and_b32 v1, 63, v0")
    a("v_readfirstlane_b32 s28, v2")
    a("s_and_b32 s26, s2, 7")
    a("s_lshr_b32 s27, s2, 3")
    a("s_and_b32 s36, s27, 3")
    a("s_lshr_b32 s37, s27, 2")
    a("s_and_b32 s56, s37, 1")
    a("s_lshr_b32 s57, s37, 1")
    a("s_lshl_b32 s57, s57, 2")
    a("s_add_u32 s57, s57, s36")
    a(f"s_add_u32 s58, s26, {COSH}")
    a("s_and_b32 s58, s58, 7")
    if ts:
        for i in range(1, NTS):
            a(f"s_mov_b64 s[{84+2*i}:{85+2*i}], 0")
    a("s_cmp_eq_u32 s28, 0")
    a("s_cbranch_scc1 L_LD")
    a("s_cmp_lt_u32 s28, 5")
    a("s_cbranch_scc1 L_B")
    a("s_cmp_lt_u32 s28, 9")
    a("s_cbranch_scc1 L_A")
    a("s_branch L_C")

    a.label("L_LD")
    a("v_bfe_u32 v3, v1, 1, 2")
    a("v_lshrrev_b32 v4, 4, v1")
    a("v_xor_b32 v3, v3, v4")
    a("v_lshlrev_b32 v3, 1, v3")
    a("v_and_b32 v5, 1, v1")
    a("v_or_b32 v3, v3, v5")
    a("v_lshlrev_b32 v3, 4, v3")
    a("v_lshrrev_b32 v5, 3, v1")
    a("v_lshl_add_u32 v10, v5, 13, v3")
    a("s_lshl_b32 s45, s36, 21")
    a("s_lshl_b32 s38, s26, 3")
    a("s_add_u32 s38, s38, s37")
    a("s_lshl_b32 s38, s38, 7")
    a("s_add_u32 s45, s45, s38")
    a("s_mov_b32 s67, 0x20000")
    a("s_mov_b32 s66, 0x800000")
    a("s_mov_b32 s46, 0")
    a("s_mov_b32 s48, 0")
    a("s_mov_b32 s74, 0")
    a("s_waitcnt lgkmcnt(0)")
    a("s_mov_b32 s64, s10")
    a("s_and_b32 s65, s11, 0xffff")
    GR = 4

    def issue4(vo, step):
        for i in range(4):
            a("s_mov_b32 m0, s46")
            a("s_add_u32 s46, s46, 1024")
            a(f"buffer_load_dwordx4 {vo(i)}, s[64:67], s45 offen {ldflag} lds")
            a(f"s_add_u32 s45, s45, {step}")
        a("s_add_u32 s48, s48, 4")

    a.label("L_ld0")
    issue4(lambda i: "v10", 8 * 8192)
    a(f"s_cmp_lt_u32 s48, {min(D, 28)}")
    a("s_cbranch_scc1 L_ld0")
    a("v_lshlrev_b32 v20, 2, v1")
    a(f"v_add_u32 v20, {F_LANDED}, v20")
    a("v_mul_u32_u24 v6, 7168, v5")
    a("v_add_u32 v11, v6, v3")
    a("v_and_b32 v6, 15, v1")
    for i in range(4):
        a(f"v_add_u32 v7, {4*i}, v4")
        a("v_xor_b32 v7, v7, v6")
        a("v_lshlrev_b32 v7, 4, v7")
        a(f"v_lshl_add_u32 v{12+i}, v4, 8, v7")
    for i in range(2):
        a(f"v_add_u32 v7, {4*i}, v4")
        a("v_lshlrev_b32 v7, 1, v7")
        a("v_xor_b32 v7, v7, v6")
        a("v_lshlrev_b32 v7, 4, v7")
        a(f"v_lshl_add_u32 v{16+i}, v4, 8, v7")
        a(f"v_lshl_add_u32 v{18+i}, v4, 11, v7")
    a("s_lshl_b32 s42, s26, 23")
    a("s_lshl_b32 s38, s27, 15")
    a("s_add_u32 s42, s42, s38")
    a("s_add_u32 s42, s42, 0x700000")
    a("s_mov_b32 s50, 0")
    a("s_mov_b32 s75, -1")
    a("s_barrier")

    def seg(ptr, size, base, slot, n, vo, step, depth, first=False):
        if not first:
            a(f"s_mov_b32 s64, s{ptr}")
            a(f"s_and_b32 s65, s{ptr+1}, 0xffff")
            a(f"s_mov_b32 s66, {size}")
            a(f"s_mov_b32 s45, {base}")
            a(f"s_mov_b32 s46, {slot}")
        lab = L("ld")
        a.label(lab)
        a(f"s_sub_u32 s49, s48, {depth - GR}")
        a("s_max_i32 s49, s49, s74")
        a("s_mov_b32 s74, s49")
        a("s_cmp_ge_u32 s49, s75")
        a("s_cselect_b32 s47, s50, 0")
        a("s_add_u32 s49, s49, s47")
        a("v_mov_b32 v21, s49")
        a(f"s_waitcnt vmcnt({depth - GR})")
        a("ds_write_b32 v20, v21")
        issue4(vo, step)
        a(f"s_cmp_lt_u32 s46, {slot + n*1024}")
        a(f"s_cbranch_scc1 {lab}")

    def drain(total, frm, to=0):
        k = frm
        while k >= to:
            a(f"v_mov_b32 v21, {total - k}")
            a(f"s_waitcnt vmcnt({k})")
            a("ds_write_b32 v20, v21")
            k -= GR

    seg(10, 0x800000, None, S0, 32, lambda i: "v10", 8 * 8192, D, first=True)
    stamp(3)
    seg(6, 0x4000000, "s42", S1, 32, lambda i: f"v{12 + i}", 1024, D)
    stamp(4)
    a("s_cmp_eq_u32 s56, 1")
    a("s_cbranch_scc1 L_ldY")
    a("s_lshl_b32 s43, s57, 19")
    a("s_lshl_b32 s38, s58, 8")
    a("s_add_u32 s43, s43, s38")
    seg(12, 0x800000, "s43", S2, 64, lambda i: f"v{18 + (i & 1)}", 4 * 2048, D)
    a("s_branch L_ldV")
    a.label("L_ldY")
    a(f"s_mul_i32 s41, s36, {256*7168}")
    cg1("s38", False)
    a("s_lshl_b32 s38, s38, 7")
    a("s_add_u32 s43, s41, s38")
    seg(16, 0x700000, "s43", S2, 32, lambda i: "v11", 8 * 7168, D)
    a("s_cmp_eq_u32 s37, 3")
    a("s_cselect_b32 s50, 32, 0")
    a("s_cselect_b32 s75, 96, s75")
    a("s_cbranch_scc1 L_ldV")
    cg1("s38", True)
    a("s_lshl_b32 s38, s38, 7")
    a("s_add_u32 s43, s41, s38")
    seg(16, 0x700000, "s43", S3, 32, lambda i: "v11", 8 * 7168, D)
    a.label("L_ldV")
    stamp(5)
    lds_wait_ge(F_FREE0, 4, "v22", "v23")
    seg(8, 0x4000000, "s42", S0, 32, lambda i: f"v{16 + (i & 1)}", 1024, Dv)
    stamp(1)
    a("s_cmp_eq_u32 s56, 1")
    a("s_cbranch_scc1 L_ldW2")
    drain(160, Dv - GR)
    stamp(2)
    if ts:
        a("s_branch L_TSOUT")
    a("s_endpgm")
    a.label("L_ldW2")
    a(f"s_mul_i32 s45, s57, {224*2048}")
    a("s_lshl_b32 s38, s58, 8")
    a("s_add_u32 s45, s45, s38")
    a("s_mov_b32 s64, s18")
    a("s_and_b32 s65, s19, 0xffff")
    a("s_mov_b32 s66, 0x700000")
    a(f"s_mov_b32 s46, {S2}")
    drain(160, Dv - GR, 12)
    lds_wait_ge(F_FREE1, 4, "v22", "v23")
    for _ in range(pre // 4):
        issue4(lambda i: f"v{18 + (i & 1)}", 4 * 2048)
    drain(160 + pre, 8 + pre, pre)
    stamp(2)
    lds_wait_ge(F_OP, 4, "v22", "v23")
    a(f"s_mov_b32 s48, {160 + pre}")
    a("s_mov_b32 s74, 160")
    a("s_mov_b32 s50, 0")
    seg(18, 0x700000, None, S2, 56, lambda i: f"v{18 + (i & 1)}", 4 * 2048, Dw, first=True)
    stamp(6)
    drain(216, Dw - GR)
    stamp(7)
    if ts:
        a("s_branch L_TSOUT")
    a("s_endpgm")

    def proj_setup(slot):
        a("v_lshrrev_b32 v4, 2, v1")
        a("v_lshlrev_b32 v4, 7, v4")
        a("v_and_b32 v5, 3, v1")
        a("v_lshl_add_u32 v4, v5, 3, v4")
        a("v_bfe_u32 v5, v1, 3, 2")
        a("v_xor_b32 v5, s33, v5")
        a("v_lshl_add_u32 v100, v5, 5, v4")
        if slot:
            a(f"v_add_u32 v100, {slot}, v100")

    def pub_addr(wsbase, ncols):
        a("v_lshrrev_b32 v4, 4, v1")
        a("v_lshlrev_b32 v4, 4, v4")
        a("v_and_b32 v5, 1, v1")
        a("v_lshlrev_b32 v6, 6, v5")
        a("s_lshl_b32 s30, s38, 9")
        a(f"s_mul_i32 s31, s36, {ncols*8}")
        a("s_add_u32 s30, s30, s31")
        a("s_lshl_b32 s31, s33, 7")
        a("s_add_u32 s30, s30, s31")
        a(f"s_add_u32 s30, s30, {wsbase}")
        a("v_add3_u32 v102, v6, v4, s30")

    a.label("L_B")
    a("s_sub_u32 s33, s28, 1")
    a("s_mov_b32 s59, 1")
    a("s_cmp_ge_u32 s33, 2")
    a("s_cbranch_scc1 L_B23")
    a("s_lshl_b32 s30, s33, 11")
    a("v_lshlrev_b32 v3, 5, v1")
    a("v_add_u32 v3, s30, v3")
    a("s_lshl_b32 s31, s36, 9")
    a("s_add_u32 s30, s30, s31")
    a("v_lshlrev_b32 v4, 3, v1")
    a("v_add_u32 v4, s30, v4")
    a("s_waitcnt lgkmcnt(0)")
    a("global_load_dwordx4 v[8:11], v3, s[4:5]")
    a("global_load_dwordx4 v[12:15], v3, s[4:5] offset:16")
    a("global_load_dwordx2 v[16:17], v4, s[4:5]")
    a("v_lshrrev_b32 v5, 3, v1")
    a("v_lshlrev_b32 v5, 6, v5")
    a("v_and_b32 v6, 3, v1")
    a("v_lshl_add_u32 v5, v6, 4, v5")
    a("v_bfe_u32 v6, v1, 2, 1")
    a("v_lshl_add_u32 v5, v6, 3, v5")
    a(f"s_mul_i32 s30, s33, {XN_BS}")
    a(f"s_add_u32 s30, s30, {XN}")
    a("v_add_u32 v98, s30, v5")
    a("v_mov_b32 v26, 0x3a800000")
    a("s_barrier")
    a("s_waitcnt vmcnt(1)")
    stamp(6)
    a("v_readlane_b32 s30, v8, 0")
    for i in range(8):
        a(f"v_lshlrev_b32 v{32+2*i}, 16, v{8+i}")
        a(f"v_and_b32 v{33+2*i}, 0xffff0000, v{8+i}")
    a("s_lshl_b32 s30, s30, 16")
    a("s_mov_b32 s31, s30")
    for i in range(8):
        a(f"v_pk_add_f32 v[{32+2*i}:{33+2*i}], v[{32+2*i}:{33+2*i}], s[30:31] neg_lo:[0,1] neg_hi:[0,1]")
    a("v_pk_add_f32 v[20:21], v[32:33], v[34:35]")
    a("v_pk_mul_f32 v[22:23], v[32:33], v[32:33]")
    a("v_pk_fma_f32 v[22:23], v[34:35], v[34:35], v[22:23]")
    for i in range(2, 8):
        a(f"v_pk_add_f32 v[20:21], v[20:21], v[{32+2*i}:{33+2*i}]")
        a(f"v_pk_fma_f32 v[22:23], v[{32+2*i}:{33+2*i}], v[{32+2*i}:{33+2*i}], v[22:23]")
    a("v_add_f32 v20, v20, v21")
    a("v_add_f32 v22, v22, v23")
    for mod in ("quad_perm:[1,0,3,2] row_mask:0xf bank_mask:0xf", "quad_perm:[2,3,0,1] row_mask:0xf bank_mask:0xf",
                "row_half_mirror row_mask:0xf bank_mask:0xf", "row_mirror row_mask:0xf bank_mask:0xf",
                "row_bcast:15 row_mask:0xa bank_mask:0xf", "row_bcast:31 row_mask:0xc bank_mask:0xf"):
        a("s_nop 0")
        a(f"v_add_f32_dpp v20, v20, v20 {mod}")
        a(f"v_add_f32_dpp v22, v22, v22 {mod}")
    a("s_waitcnt vmcnt(0)")
    a("v_readlane_b32 s40, v20, 63")
    a("v_readlane_b32 s41, v22, 63")
    a("v_lshlrev_b32 v32, 16, v16")
    a("v_and_b32 v33, 0xffff0000, v16")
    a("v_mul_f32 v20, s40, v26")
    a("v_mul_f32 v22, s41, v26")
    a("v_lshlrev_b32 v34, 16, v17")
    a("v_and_b32 v35, 0xffff0000, v17")
    a("v_fma_f32 v22, -v20, v20, v22")
    a("v_add_f32 v20, s30, v20")
    a("v_max_f32 v22, 0, v22")
    a("v_cvt_pk_bf16_f32 v24, v20, v22")
    a("v_lshlrev_b32 v20, 16, v24")
    a("v_and_b32 v22, 0xffff0000, v24")
    a("v_add_f32 v22, 0x3727c5ac, v22")
    a("v_pk_add_f32 v[32:33], v[32:33], v[20:21] op_sel_hi:[1,0] neg_lo:[0,1] neg_hi:[0,1]")
    a("v_cvt_pk_bf16_f32 v24, v22, v22")
    a("v_pk_add_f32 v[34:35], v[34:35], v[20:21] op_sel_hi:[1,0] neg_lo:[0,1] neg_hi:[0,1]")
    a("v_lshlrev_b32 v22, 16, v24")
    a("v_cvt_pk_bf16_f32 v16, v32, v33")
    a("v_sqrt_f32 v22, v22")
    a("v_cvt_pk_bf16_f32 v17, v34, v35")
    a("v_cvt_pk_bf16_f32 v24, v22, v22")
    a("v_lshlrev_b32 v32, 16, v16")
    a("v_lshlrev_b32 v22, 16, v24")
    a("v_and_b32 v33, 0xffff0000, v16")
    a("v_rcp_f32 v22, v22")
    a("v_lshlrev_b32 v34, 16, v17")
    a("v_and_b32 v35, 0xffff0000, v17")
    a("v_pk_mul_f32 v[32:33], v[32:33], v[22:23] op_sel_hi:[1,0]")
    a("v_pk_mul_f32 v[34:35], v[34:35], v[22:23] op_sel_hi:[1,0]")
    a("v_cvt_pk_bf16_f32 v16, v32, v33")
    a("v_cvt_pk_bf16_f32 v17, v34, v35")
    a("ds_write_b64 v98, v[16:17]")
    arrive(F_XN)
    stamp(7)
    a("s_branch L_BC")
    a.label("L_B23")
    a("s_cmp_eq_u32 s33, 3")
    a("s_cbranch_scc1 L_B3")
    nz = (LDS_TOTAL - ZR) // 16
    assert nz <= 64 and (LDS_TOTAL - ZR) % 16 == 0 and ZR % 16 == 0
    a("v_lshlrev_b32 v3, 4, v1")
    a(f"v_add_u32 v3, {ZR}, v3")
    for r in range(4, 8):
        a(f"v_mov_b32 v{r}, 0")
    a(f"v_cmp_gt_u32 vcc, {nz}, v1")
    a("s_and_saveexec_b64 s[30:31], vcc")
    a("ds_write_b128 v3, v[4:7]")
    a("s_mov_b64 exec, -1")
    a("s_waitcnt lgkmcnt(0)")
    a.label("L_B3")
    a("s_barrier")
    a.label("L_BC")
    a("s_add_u32 s32, s33, 4")
    a("s_cmp_eq_u32 s56, 1")
    a("s_cbranch_scc1 L_BY")
    get_tag()
    a("s_branch L_GS")
    a.label("L_BY")
    proj_setup(S2)
    cg1("s38", False)
    pub_addr(WS_H, 3584)
    a(f"s_mov_b32 s52, {SEG_M}")
    a("s_mov_b32 s60, 0")
    a("s_branch L_PROJ")

    a.label("L_A")
    a("s_sub_u32 s33, s28, 5")
    a("s_mov_b32 s32, s33")
    if aprio:
        a(f"s_setprio {aprio}")
    a("s_mov_b32 s59, 0")
    a("s_barrier")
    proj_setup(S0)
    a("s_lshl_b32 s38, s26, 3")
    a("s_add_u32 s38, s38, s37")
    pub_addr(WS_Q, 4096)
    a(f"s_mov_b32 s52, {SEG_WQ}")
    a.label("L_PROJ")
    a(f"v_mul_u32_u24 v6, {XN_BS}, v5")
    a(f"s_mov_b32 s55, {XN}")
    a("v_add3_u32 v101, v6, v4, s55")
    lds_wait_ge(F_XN, 2, slp=1)
    for t in range(8):
        a(f"ds_read_b128 v[{32+4*t}:{35+4*t}], v101 offset:{t*64}")
    get_tag()
    a("s_mov_b32 s46, 0x00030003")
    a("s_mov_b32 s47, 0x00030003")
    a.label("L_PROJ2")
    for (t0, t1) in ((0, 4), (4, 8)):
        a(f"s_add_u32 s54, s52, {4*t1}")
        lds_wait_ge(F_LANDED, "s54", slp=1)
        for t in range(t0, t1):
            r = 64 + (t - t0) * 4
            a(f"ds_read_b64_tr_b16 v[{r}:{r+1}], v100 offset:{t*4096}")
            a(f"ds_read_b64_tr_b16 v[{r+2}:{r+3}], v100 offset:{t*4096 + 2048}")
        for t in range(t0, t1):
            r = 64 + (t - t0) * 4
            a(f"s_waitcnt lgkmcnt({2*(t1-1-t)})")
            c = "0" if t == 0 else "v[28:31]"
            a(f"v_mfma_f32_16x16x32_bf16 v[28:31], v[{r}:{r+3}], v[{32+4*t}:{35+4*t}], {c}")
    a("s_nop 7")
    for i in range(4):
        a(f"v_and_or_b32 v{28+i}, v{28+i}, s39, v99")
    a("s_mov_b64 exec, s[46:47]")
    a("global_store_dwordx4 v102, v[28:31], s[24:25] sc1")
    a("s_mov_b64 exec, -1")
    stamp(1)
    a("s_cmp_eq_u32 s59, 0")
    a("s_cbranch_scc1 L_PA")
    a("s_cmp_eq_u32 s60, 1")
    a("s_cbranch_scc1 L_PB")
    a("s_cmp_eq_u32 s37, 3")
    a("s_cbranch_scc1 L_PB")
    a("s_mov_b32 s60, 1")
    a(f"v_add_u32 v100, {S3 - S2}, v100")
    cg1("s38", True)
    pub_addr(WS_H, 3584)
    a(f"s_mov_b32 s52, {SEG_M + 32}")
    a("s_branch L_PROJ2")
    a.label("L_PB")
    arrive(F_FREE1)
    a("s_branch L_GS")
    a.label("L_PA")
    arrive(F_FREE0)
    a.label("L_GS")
    a("v_lshrrev_b32 v4, 4, v1")
    a("v_lshlrev_b32 v4, 4, v4")
    a("v_and_b32 v5, 1, v1")
    a(f"v_mul_u32_u24 v5, {XN_BS}, v5")
    a(f"s_mov_b32 s55, {VB}")
    a("v_add3_u32 v104, v5, v4, s55")
    a("v_lshrrev_b32 v5, 2, v1")
    a("v_and_b32 v6, 3, v1")
    a("v_lshlrev_b32 v6, 3, v6")
    a("v_lshl_add_u32 v6, v5, 8, v6")
    a("v_and_b32 v5, 7, v5")
    a("v_xor_b32 v7, s32, v5")
    a("v_lshl_add_u32 v106, v7, 5, v6")
    a(f"v_add_u32 v106, {S2}, v106")
    a("s_lshl_b32 s30, s33, 1")
    a("v_xor_b32 v7, s30, v5")
    a("v_lshl_add_u32 v110, v7, 5, v6")
    a("v_xor_b32 v7, 1, v7")
    a("v_lshl_add_u32 v111, v7, 5, v6")
    a("v_lshlrev_b32 v5, 3, v1")
    a("s_lshl_b32 s30, s26, 1")
    a("s_add_u32 s30, s30, s56")
    a("s_lshl_b32 s30, s30, 4")
    a("s_add_u32 s30, s30, s57")
    a("s_lshl_b32 s30, s30, 10")
    a("s_lshl_b32 s31, s32, 7")
    a("s_add_u32 s30, s30, s31")
    a(f"s_add_u32 s30, s30, {WS_S}")
    a("v_add_u32 v108, s30, v5")
    a("s_cmp_eq_u32 s59, 0")
    a("s_cbranch_scc1 L_ATT")
    lds_wait_ge(F_CO, 1, slp=4)
    a("s_mov_b32 s53, s35")
    a("s_cmp_eq_u32 s56, 0")
    a("s_cbranch_scc1 L_GX")
    a("s_cmp_ge_u32 s33, 2")
    a("s_cbranch_scc1 L_GY")
    a("v_min_u32 v5, 55, v1")
    a("v_lshrrev_b32 v6, 2, v5")
    a("v_lshlrev_b32 v3, 7, v6")
    a("v_and_b32 v6, 3, v5")
    a("v_lshl_add_u32 v3, v6, 4, v3")
    a(f"s_mul_i32 s30, s57, {14*128}")
    a("s_lshl_b32 s31, s33, 6")
    a("s_add_u32 s30, s30, s31")
    a(f"s_add_u32 s30, s30, {WS_H}")
    a("v_add_u32 v8, s30, v3")
    for ks in range(1, 4):
        a(f"v_add_u32 v{8+ks}, {ks*3584*8}, v8")
    lds_wait_ge(F_LANDED, hstart, slp=2)
    stamp(2)
    poll("H", [f"global_load_dwordx4 v[{32+4*ks}:{35+4*ks}], v{8+ks}, s[24:25] sc1" for ks in range(4)],
         list(range(32, 48)), "v99", "v27")
    stamp(3)
    a("v_pk_add_f32 v[32:33], v[32:33], v[36:37]")
    a("v_pk_add_f32 v[34:35], v[34:35], v[38:39]")
    a("v_pk_add_f32 v[40:41], v[40:41], v[44:45]")
    a("v_pk_add_f32 v[42:43], v[42:43], v[46:47]")
    a("v_pk_add_f32 v[32:33], v[32:33], v[40:41]")
    a("v_pk_add_f32 v[34:35], v[34:35], v[42:43]")
    for j in range(4):
        a(f"v_max_f32 v{32+j}, 0, v{32+j}")
    a("v_cvt_pk_bf16_f32 v36, v32, v33")
    a("v_cvt_pk_bf16_f32 v37, v34, v35")
    a(f"ds_write_b64 v98, v[36:37] offset:{VB - XN}")
    arrive(F_VB)
    a("s_branch L_GY")

    a.label("L_ATT")
    a("s_lshr_b32 s30, s26, 2")
    a("s_lshl_b32 s30, s30, 6")
    a("s_and_b32 s31, s26, 3")
    a("s_lshl_b32 s31, s31, 13")
    a("s_add_u32 s30, s30, s31")
    a("s_lshl_b32 s31, s33, 11")
    a("s_add_u32 s30, s30, s31")
    a(f"s_add_u32 s30, s30, {WS_Q}")
    a("v_lshrrev_b32 v4, 2, v1")
    a("v_lshlrev_b32 v4, 7, v4")
    a("v_and_b32 v5, 3, v1")
    a("v_lshl_add_u32 v4, v5, 4, v4")
    a("v_add_u32 v8, s30, v4")
    for ks in range(1, 4):
        a(f"v_add_u32 v{8+ks}, {ks*32768}, v8")
    a("v_lshrrev_b32 v4, 5, v1")
    a(f"v_mul_u32_u24 v4, {QL_RS}, v4")
    a("v_and_b32 v5, 31, v1")
    a("v_lshl_add_u32 v4, v5, 3, v4")
    a(f"s_mul_i32 s30, s33, {2*QL_RS}")
    a(f"s_add_u32 s30, s30, {QL}")
    a("v_add_u32 v12, s30, v4")
    a("v_lshrrev_b32 v4, 4, v1")
    a("v_lshlrev_b32 v5, 4, v4")
    a("v_and_b32 v3, 7, v1")
    a(f"v_mul_u32_u24 v6, {QL_RS}, v3")
    a("v_add_u32 v6, v6, v5")
    a(f"v_add_u32 v6, {QL}, v6")
    a(f"v_add_u32 v5, {ZR}, v5")
    a("v_bfe_u32 v7, v1, 3, 1")
    a("v_cmp_eq_u32 vcc, 0, v7")
    a("v_lshlrev_b32 v19, 7, v4")
    a("v_lshl_add_u32 v19, v3, 4, v19")
    a("v_cndmask_b32 v13, v5, v6, vcc")
    a("v_cndmask_b32 v14, v6, v5, vcc")
    a(f"v_add_u32 v19, {PL}, v19")
    a("s_lshl_b32 s30, s33, 9")
    a("v_lshl_add_u32 v114, v7, 3, v19")
    a("v_add_u32 v114, s30, v114")
    a("v_cndmask_b32 v116, v5, v19, vcc")
    a("v_cndmask_b32 v117, v19, v5, vcc")
    a("v_mov_b32 v6, 0x200")
    a("v_cndmask_b32 v118, 0, v6, vcc")
    a("v_cndmask_b32 v119, v6, 0, vcc")
    a("v_lshlrev_b32 v113, 4, v3")
    a(f"v_add_u32 v113, {MX}, v113")
    a("s_lshl_b32 s30, s33, 2")
    a("v_add_u32 v112, s30, v113")
    a("v_and_b32 v5, 15, v1")
    a("s_lshl_b32 s30, s33, 13")
    a(f"s_add_u32 s30, s30, {S1}")
    for u in range(4):
        a(f"v_add_u32 v6, {4*u}, v4")
        a("v_xor_b32 v6, v6, v5")
        a("v_lshlrev_b32 v6, 4, v6")
        a("v_lshl_add_u32 v6, v5, 8, v6")
        a(f"v_add_u32 v{15+u}, s30, v6")
    a("v_lshlrev_b32 v96, 14, v3")
    a("v_lshl_add_u32 v96, v7, 6, v96")
    a("v_lshl_add_u32 v96, v4, 4, v96")
    a("s_lshl_b32 s30, s26, 17")
    a("s_lshl_b32 s31, s27, 7")
    a("s_add_u32 s30, s30, s31")
    a("s_lshl_b32 s31, s33, 12")
    a("s_add_u32 s30, s30, s31")
    a(f"s_add_u32 s30, s30, {WS_O}")
    a("v_add_u32 v96, s30, v96")
    a("v_lshlrev_b32 v115, 3, v1")
    a("s_lshl_b32 s30, s26, 12")
    a("s_lshl_b32 s31, s27, 7")
    a("s_add_u32 s30, s30, s31")
    a(f"s_add_u32 s30, s30, {WS_ML}")
    a("v_add_u32 v115, s30, v115")
    a("s_mov_b32 s40, 0x3db504f3")
    a("s_mov_b32 s41, 0x3fb8aa3b")
    lds_wait_ge(F_LANDED, max(qstart, SEG_K + 32), slp=2)
    stamp(2)
    for u in range(4):
        for T in range(2):
            r = 32 + (T * 4 + u) * 4
            a(f"ds_read_b128 v[{r}:{r+3}], v{15+u} offset:{T*4096}")
    poll("Q", [f"global_load_dwordx4 v[{64+4*ks}:{67+4*ks}], v{8+ks}, s[24:25] sc1" for ks in range(4)],
         list(range(64, 80)), "v99", "v27")
    stamp(3)
    a("v_pk_add_f32 v[64:65], v[64:65], v[68:69]")
    a("v_pk_add_f32 v[66:67], v[66:67], v[70:71]")
    a("v_pk_add_f32 v[72:73], v[72:73], v[76:77]")
    a("v_pk_add_f32 v[74:75], v[74:75], v[78:79]")
    a("v_pk_add_f32 v[64:65], v[64:65], v[72:73]")
    a("v_pk_add_f32 v[66:67], v[66:67], v[74:75]")
    a("v_cvt_pk_bf16_f32 v64, v64, v65")
    a("v_cvt_pk_bf16_f32 v65, v66, v67")
    a("ds_write_b64 v12, v[64:65]")
    arrive(F_Q)
    lds_wait_ge(F_CO, 1)
    a("s_mov_b32 s53, s35")
    lds_wait_ge(F_Q, 4)
    for u in range(4):
        a(f"ds_read_b128 v[{64+4*u}:{67+4*u}], v13 offset:{u*64}")
        a(f"ds_read_b128 v[{80+4*u}:{83+4*u}], v14 offset:{u*64}")
    for u in range(4):
        a(f"s_waitcnt lgkmcnt({7-2*u})")
        c = "0" if u == 0 else "v[28:31]"
        a(f"v_mfma_f32_16x16x32_bf16 v[28:31], v[{32+4*u}:{35+4*u}], v[{64+4*u}:{67+4*u}], {c}")
        a(f"s_waitcnt lgkmcnt({6-2*u})")
        a(f"v_mfma_f32_16x16x32_bf16 v[28:31], v[{48+4*u}:{51+4*u}], v[{80+4*u}:{83+4*u}], v[28:31]")
    a("s_nop 7")
    a("v_cvt_pk_bf16_f32 v64, v28, v29")
    a("v_cvt_pk_bf16_f32 v65, v30, v31")
    a("v_lshlrev_b32 v28, 16, v64")
    a("v_and_b32 v29, 0xffff0000, v64")
    a("v_lshlrev_b32 v30, 16, v65")
    a("v_and_b32 v31, 0xffff0000, v65")
    a("v_pk_mul_f32 v[28:29], v[28:29], s[40:41] op_sel_hi:[1,0]")
    a("v_pk_mul_f32 v[30:31], v[30:31], s[40:41] op_sel_hi:[1,0]")
    a("v_cvt_pk_bf16_f32 v64, v28, v29")
    a("v_cvt_pk_bf16_f32 v65, v30, v31")
    a("v_lshlrev_b32 v28, 16, v64")
    a("v_and_b32 v29, 0xffff0000, v64")
    a("v_lshlrev_b32 v30, 16, v65")
    a("v_and_b32 v31, 0xffff0000, v65")
    a("v_max3_f32 v66, v28, v29, v30")
    a("v_max_f32 v66, v66, v31")
    a("s_nop 1")
    a("v_max_f32_dpp v66, v66, v66 row_ror:8 row_mask:0xf bank_mask:0xf")
    a("v_mov_b32 v67, v66")
    a("s_nop 1")
    a("v_permlane16_swap_b32 v66, v67")
    a("v_max_f32 v66, v66, v67")
    a("v_mov_b32 v67, v66")
    a("s_nop 1")
    a("v_permlane32_swap_b32 v66, v67")
    a("v_max_f32 v66, v66, v67")
    a("ds_write_b32 v112, v66")
    arrive(F_MX)
    lds_wait_ge(F_MX, 4)
    a("ds_read_b128 v[68:71], v113")
    a("s_waitcnt lgkmcnt(0)")
    a("v_max3_f32 v66, v68, v69, v70")
    a("v_max_f32 v66, v66, v71")
    for i in range(4):
        a(f"v_sub_f32 v{28+i}, v{28+i}, v66")
    for i in range(4):
        a(f"v_mul_f32 v{28+i}, s41, v{28+i}")
    for i in range(4):
        a(f"v_exp_f32 v{28+i}, v{28+i}")
    a("v_mov_b32 v20, v66")
    a("v_cvt_pk_bf16_f32 v64, v28, v29")
    a("v_cvt_pk_bf16_f32 v65, v30, v31")
    a("v_add_f32 v67, v28, v29")
    a("v_add_f32 v68, v30, v31")
    a("ds_write_b64 v114, v[64:65]")
    a("v_add_f32 v67, v67, v68")
    a("s_nop 1")
    a("v_add_f32_dpp v67, v67, v67 row_ror:8 row_mask:0xf bank_mask:0xf")
    a("v_mov_b32 v68, v67")
    a("s_nop 1")
    a("v_permlane16_swap_b32 v67, v68")
    a("v_add_f32 v67, v67, v68")
    a("v_mov_b32 v68, v67")
    a("s_nop 1")
    a("v_permlane32_swap_b32 v67, v68")
    a("v_add_f32 v67, v67, v68")
    a(f"ds_write_b32 v112, v67 offset:{LX - MX}")
    arrive(F_P)
    lds_wait_ge(F_P, 4)
    a("s_cmp_lg_u32 s33, 0")
    a("s_cbranch_scc1 L_noml")
    a(f"ds_read_b128 v[24:27], v113 offset:{LX - MX}")
    a("v_or_b32 v20, v20, v99")
    a("s_waitcnt lgkmcnt(0)")
    a("v_add_f32 v24, v24, v25")
    a("v_add_f32 v26, v26, v27")
    a("v_add_f32 v21, v24, v26")
    a("v_and_or_b32 v21, v21, s39, v99")
    a("s_mov_b64 exec, 0xffff")
    store2("global_store_dwordx2 v115, v[20:21], s[24:25]")
    a("s_mov_b64 exec, -1")
    a.label("L_noml")
    stamp(4)
    for i in range(4):
        a(f"v_mov_b32 v{28+i}, 0")
    a(f"s_mov_b32 s54, {SEG_V + 8}")
    a.label("L_PVL")
    a("ds_read_b128 v[64:67], v116")
    a("ds_read_b128 v[68:71], v117")
    lds_wait_ge(F_LANDED, "s54")
    a("ds_read_b64_tr_b16 v[32:33], v110")
    a("ds_read_b64_tr_b16 v[34:35], v110 offset:4096")
    a("ds_read_b64_tr_b16 v[36:37], v111")
    a("ds_read_b64_tr_b16 v[38:39], v111 offset:4096")
    a("v_add_u32 v116, v116, v118")
    a("v_add_u32 v117, v117, v119")
    a("v_add_u32 v110, 0x2000, v110")
    a("v_add_u32 v111, 0x2000, v111")
    a("s_add_u32 s54, s54, 8")
    a("s_waitcnt lgkmcnt(2)")
    a("v_mfma_f32_16x16x32_bf16 v[28:31], v[32:35], v[64:67], v[28:31]")
    a("s_waitcnt lgkmcnt(0)")
    a("v_mfma_f32_16x16x32_bf16 v[28:31], v[36:39], v[68:71], v[28:31]")
    a(f"s_cmp_le_u32 s54, {SEG_V + 32}")
    a("s_cbranch_scc1 L_PVL")
    a("s_nop 5")
    for i in range(4):
        a(f"v_and_or_b32 v{28+i}, v{28+i}, s39, v99")
    store2("global_store_dwordx4 v96, v[28:31], s[24:25]")
    arrive(F_OP)
    stamp(5)
    a("s_cmp_eq_u32 s56, 1")
    a("s_cbranch_scc1 L_GY")
    a.label("L_GX")
    lds_wait_ge(F_LANDED, SEG_M + 64, slp=2)
    for u in range(8):
        r = 64 + u * 4
        a(f"ds_read_b64_tr_b16 v[{r}:{r+1}], v106 offset:{u*8192}")
        a(f"ds_read_b64_tr_b16 v[{r+2}:{r+3}], v106 offset:{u*8192+4096}")
        if u == 3:
            a("s_waitcnt lgkmcnt(0)")
    lds_wait_ge(F_OP, 4, slp=2)
    lds_wait_ge(F_VB, 2)
    stamp(6)
    for u in range(8):
        a(f"ds_read_b128 v[{32+4*u}:{35+4*u}], v104 offset:{u*64}")
    for u in range(8):
        a(f"s_waitcnt lgkmcnt({7-u})")
        c = "0" if u == 0 else "v[28:31]"
        a(f"v_mfma_f32_16x16x32_bf16 v[28:31], v[{32+4*u}:{35+4*u}], v[{64+4*u}:{67+4*u}], {c}")
    a("s_branch L_GE")
    a.label("L_GY")
    lds_wait_ge(F_VB, 2, slp=1)
    for u in range(7):
        a(f"ds_read_b128 v[{32+4*u}:{35+4*u}], v104 offset:{u*64}")
    for (u0, u1) in ((0, 4), (4, 6), (6, 7)):
        lds_wait_ge(F_LANDED, SEG_W2 + 8 * u1)
        for u in range(u0, u1):
            r = 64 + u * 4
            a(f"ds_read_b64_tr_b16 v[{r}:{r+1}], v106 offset:{u*8192}")
            a(f"ds_read_b64_tr_b16 v[{r+2}:{r+3}], v106 offset:{u*8192+4096}")
        for u in range(u0, u1):
            a(f"s_waitcnt lgkmcnt({2*(u1-1-u)})")
            c = "0" if u == 0 else "v[28:31]"
            a(f"v_mfma_f32_16x16x32_bf16 v[28:31], v[{32+4*u}:{35+4*u}], v[{64+4*u}:{67+4*u}], {c}")
    a.label("L_GE")
    a("s_nop 7")
    a("v_and_or_b32 v28, v28, s39, v99")
    a("v_and_or_b32 v29, v29, s39, v99")
    a("s_mov_b64 exec, 0xffff")
    store2("global_store_dwordx2 v108, v[28:29], s[24:25]")
    a("s_mov_b64 exec, -1")
    arrive(F_SP)
    if ts:
        a("s_cmp_eq_u32 s59, 1")
        a("s_cbranch_scc1 L_g4")
        stamp(7)
        a("s_branch L_TSOUT")
        a.label("L_g4")
        stamp(4)
        a("s_branch L_TSOUT")
    a("s_endpgm")

    a.label("L_C")
    if aprio:
        a(f"s_setprio {aprio}")
    a("s_sub_u32 s33, s28, 9")
    a("s_cmp_eq_u32 s33, 0")
    a("s_cbranch_scc1 L_C0")
    a("s_barrier")
    a("s_cmp_eq_u32 s56, 1")
    a("s_cbranch_scc1 L_end")
    a("v_mov_b32 v50, 0")
    a("v_mov_b32 v52, 0")
    get_tag()
    a("s_branch L_CC")
    a.label("L_C0")
    a("s_waitcnt lgkmcnt(0)")
    a(f"s_load_dword s51, s[24:25], {WS_EPOCH}")
    a("s_barrier")
    a("v_lshlrev_b32 v3, 2, v1")
    a(f"v_add_u32 v3, {F_TAG}, v3")
    a("s_waitcnt lgkmcnt(0)")
    a("s_mul_i32 s51, s51, 1664525")
    a("s_add_u32 s51, s51, 1013904223")
    a("s_or_b32 s51, s51, 0x1000")
    a("v_mov_b32 v4, s51")
    a("ds_write_b32 v3, v4")
    a(f"s_and_b32 s29, s51, {TAGMASK}")
    a("v_mov_b32 v99, s29")
    a("s_getreg_b32 s44, hwreg(HW_REG_XCC_ID)")
    a("s_and_b32 s44, s44, 0xff")
    a("s_lshl_b32 s44, s44, 8")
    a("s_or_b32 s44, s44, s29")
    a("s_lshl_b32 s30, s26, 12")
    a("s_lshl_b32 s31, s27, 7")
    a("s_add_u32 s31, s30, s31")
    a(f"s_add_u32 s31, s31, {WS_XC}")
    a("v_lshlrev_b32 v4, 2, v1")
    a("v_add_u32 v4, s31, v4")
    a("v_mov_b32 v5, s44")
    a("s_mov_b64 exec, 0xffffffff")
    a("global_store_dword v4, v5, s[24:25] sc1")
    a("s_mov_b64 exec, -1")
    a("v_and_b32 v7, 31, v1")
    a("v_lshlrev_b32 v9, 7, v7")
    a(f"s_add_u32 s30, s30, {WS_XC}")
    a("v_add_u32 v9, s30, v9")
    a("v_bfe_u32 v4, v1, 4, 1")
    a("v_lshlrev_b32 v4, 11, v4")
    a("v_and_b32 v5, 1, v1")
    a("v_lshl_add_u32 v4, v5, 2, v4")
    a("v_bfe_u32 v6, v1, 1, 1")
    a("v_lshl_add_u32 v4, v6, 1, v4")
    a("v_cmp_eq_u32 s[60:61], 1, v6")
    a("s_lshl_b32 s30, s58, 8")
    a("s_lshl_b32 s31, s27, 3")
    a("s_add_u32 s30, s30, s31")
    a("v_add_u32 v50, s30, v4")
    a("global_load_ushort v51, v50, s[4:5]")
    a("s_lshl_b32 s30, s26, 15")
    a("s_lshl_b32 s31, s27, 5")
    a("s_add_u32 s30, s30, s31")
    a(f"s_add_u32 s30, s30, {WS_S}")
    a("v_lshrrev_b32 v4, 1, v1")
    a("v_lshlrev_b32 v4, 10, v4")
    a("v_lshl_add_u32 v4, v5, 4, v4")
    a("v_add_u32 v52, s30, v4")
    lds_wait_ge(F_LANDED, xcstart, slp=4)
    poll("XC", ["global_load_dword v14, v9, s[24:25] sc1"], [14], "v99", "v27", slp=8)
    a("v_cmp_ne_u32 vcc, s44, v14")
    a("s_mov_b32 s53, 1")
    a("s_cmp_lg_u64 vcc, 0")
    a("s_cselect_b32 s53, 2, s53")
    if not fast:
        a("s_mov_b32 s53, 2")
    a(f"v_mov_b32 {VA}, {F_CO}")
    a(f"v_mov_b32 {VT}, s53")
    a("s_mov_b64 exec, 1")
    a(f"ds_write_b32 {VA}, {VT}")
    a("s_mov_b64 exec, -1")
    a("v_lshlrev_b32 v51, 16, v51")
    a("s_cmp_eq_u32 s56, 1")
    a("s_cbranch_scc1 L_FIN")
    a.label("L_CC")
    a("s_lshl_b32 s38, s57, 1")
    a("s_add_u32 s38, s38, s33")
    a("s_mov_b32 s41, 0x3fb8aa3b")
    a("s_mov_b32 s42, 0x07060302")
    a("v_and_b32 v7, 31, v1")
    a("v_lshrrev_b32 v4, 5, v1")
    a("v_lshlrev_b32 v5, 14, v4")
    a("v_lshl_add_u32 v5, v7, 4, v5")
    a("s_lshl_b32 s30, s38, 9")
    a(f"s_add_u32 s30, s30, {WS_O2}")
    a("v_add_u32 v24, s30, v5")
    a("v_lshrrev_b32 v5, 3, v7")
    a("v_lshlrev_b32 v5, 6, v5")
    a("v_and_b32 v6, 3, v7")
    a("v_lshl_add_u32 v5, v6, 4, v5")
    a("v_bfe_u32 v6, v7, 2, 1")
    a("v_lshl_add_u32 v5, v6, 3, v5")
    a(f"v_mul_u32_u24 v6, {XN_BS}, v4")
    a("s_lshl_b32 s30, s33, 8")
    a(f"s_add_u32 s30, s30, {VB}")
    a("v_add3_u32 v25, v5, v6, s30")
    a("v_lshlrev_b32 v10, 7, v7")
    a("s_lshl_b32 s30, s26, 12")
    a("s_lshr_b32 s31, s38, 2")
    a("s_lshl_b32 s31, s31, 3")
    a("s_add_u32 s30, s30, s31")
    a(f"s_add_u32 s30, s30, {WS_ML}")
    a("v_add_u32 v10, s30, v10")
    a("s_lshl_b32 s30, s33, 7")
    a(f"s_add_u32 s30, s30, {WB}")
    a("v_lshlrev_b32 v11, 2, v7")
    a("v_add_u32 v11, s30, v11")
    a("v_lshrrev_b32 v4, 3, v1")
    a("v_lshlrev_b32 v12, 4, v4")
    a("v_add_u32 v12, s30, v12")
    a("v_lshlrev_b32 v8, 9, v4")
    a("v_and_b32 v5, 7, v1")
    a("v_lshl_add_u32 v8, v5, 4, v8")
    a("s_lshl_b32 s30, s26, 17")
    a("s_lshl_b32 s31, s38, 12")
    a("s_add_u32 s30, s30, s31")
    a(f"s_add_u32 s30, s30, {WS_O}")
    a("v_add_u32 v8, s30, v8")
    a("v_lshlrev_b32 v13, 4, v5")
    a("v_bfe_u32 v6, v1, 5, 1")
    a("v_lshl_add_u32 v13, v6, 2, v13")
    a("v_bfe_u32 v6, v1, 4, 1")
    a("v_lshl_add_u32 v13, v6, 3, v13")
    a("s_lshl_b32 s30, s26, 12")
    a("s_lshl_b32 s31, s38, 7")
    a("s_add_u32 s30, s30, s31")
    a(f"s_add_u32 s30, s30, {WS_O2}")
    a("v_add_u32 v13, s30, v13")
    a("s_mov_b32 s46, 0x00ff00ff")
    a("s_mov_b32 s47, 0x00ff00ff")
    a("s_mov_b32 s43, 0xffff0000")
    lds_wait_ge(F_LANDED, mlstart, slp=4)
    stamp(1)
    poll("ML", ["global_load_dwordx2 v[14:15], v10, s[24:25] sc1"], [14, 15], "v99", "v27")
    stamp(2)
    a("v_and_b32 v14, 0xffff0000, v14")
    a("v_mov_b32 v16, v14")
    for mod in ("quad_perm:[1,0,3,2]", "quad_perm:[2,3,0,1]", "row_half_mirror", "row_mirror"):
        a("s_nop 1")
        a(f"v_max_f32_dpp v16, v16, v16 {mod} row_mask:0xf bank_mask:0xf")
    a("v_mov_b32 v17, v16")
    a("s_nop 1")
    a("v_permlane16_swap_b32 v16, v17")
    a("v_max_f32 v16, v16, v17")
    a("v_sub_f32 v14, v14, v16")
    a("v_mul_f32 v14, s41, v14")
    a("v_exp_f32 v14, v14")
    a("s_nop 0")
    a("v_mul_f32 v16, v14, v15")
    for mod in ("quad_perm:[1,0,3,2]", "quad_perm:[2,3,0,1]", "row_half_mirror", "row_mirror"):
        a("s_nop 1")
        a(f"v_add_f32_dpp v16, v16, v16 {mod} row_mask:0xf bank_mask:0xf")
    a("v_mov_b32 v17, v16")
    a("s_nop 1")
    a("v_permlane16_swap_b32 v16, v17")
    a("v_add_f32 v16, v16, v17")
    a("v_rcp_f32 v16, v16")
    a("s_nop 0")
    a("v_mul_f32 v14, v14, v16")
    a("ds_write_b32 v11, v14")
    a("ds_read_b128 v[20:23], v12")
    lds_wait_ge(F_OP, 1)
    stamp(3)
    poll("O1", [f"global_load_dwordx4 v[{32+4*i}:{35+4*i}], v8, s[24:25] offset:{i*128} sc1" for i in range(4)],
         list(range(32, 48)), "v99", "v27")
    stamp(4)
    a("v_pk_mul_f32 v[16:17], v[32:33], v[20:21] op_sel_hi:[1,0]")
    a("v_pk_mul_f32 v[18:19], v[34:35], v[20:21] op_sel_hi:[1,0]")
    for i in range(1, 4):
        wp = 20 + (i & ~1)
        sel = "op_sel_hi:[1,0,1]" if i % 2 == 0 else "op_sel:[0,1,0] op_sel_hi:[1,1,1]"
        a(f"v_pk_fma_f32 v[16:17], v[{32+4*i}:{33+4*i}], v[{wp}:{wp+1}], v[16:17] {sel}")
        a(f"v_pk_fma_f32 v[18:19], v[{34+4*i}:{35+4*i}], v[{wp}:{wp+1}], v[18:19] {sel}")
    a("s_nop 0")
    a("v_permlane32_swap_b32 v16, v17")
    a("v_permlane32_swap_b32 v18, v19")
    a("v_add_f32 v16, v16, v17")
    a("v_add_f32 v18, v18, v19")
    a("s_nop 1")
    a("v_permlane16_swap_b32 v16, v18")
    a("v_add_f32 v16, v16, v18")
    a("s_nop 1")
    a("v_add_f32_dpp v16, v16, v16 row_ror:8 row_mask:0xf bank_mask:0xf")
    a("v_cvt_pk_bf16_f32 v16, v16, v16")
    a("v_and_or_b32 v16, v16, s43, v99")
    a("s_mov_b64 exec, s[46:47]")
    a("global_store_dword v13, v16, s[24:25] sc1")
    a("s_mov_b64 exec, -1")
    stamp(5)
    poll("O2", ["global_load_dwordx4 v[20:23], v24, s[24:25] sc1"], [20, 21, 22, 23], "v99", "v27")
    a("v_perm_b32 v28, v21, v20, s42")
    a("v_perm_b32 v29, v23, v22, s42")
    a("ds_write_b64 v25, v[28:29]")
    arrive(F_VB)
    stamp(6)
    a("s_cmp_eq_u32 s33, 1")
    a("s_cbranch_scc1 L_CE")
    a.label("L_FIN")
    a("s_mov_b32 s46, 0x000f000f")
    a("s_mov_b32 s47, 0")
    lds_wait_ge(F_SP, 1, slp=1)
    poll("FS", ["global_load_dwordx4 v[8:11], v52, s[24:25] sc1"], list(range(8, 12)), "v99", "v16")
    a("v_permlane16_swap_b32 v8, v9")
    a("v_permlane16_swap_b32 v10, v11")
    a("v_add_f32 v8, v8, v9")
    a("v_add_f32 v10, v10, v11")
    for sh in (2, 4, 8):
        a("s_nop 0")
        a(f"v_add_f32_dpp v8, v8, v8 row_ror:{sh} row_mask:0xf bank_mask:0xf")
        a(f"v_add_f32_dpp v10, v10, v10 row_ror:{sh} row_mask:0xf bank_mask:0xf")
    a("v_cndmask_b32 v8, v8, v10, s[60:61]")
    a("v_mov_b32 v12, v8")
    a("s_nop 1")
    a("v_permlane32_swap_b32 v8, v12")
    a("v_cvt_pk_bf16_f32 v9, v8, v12")
    a("v_and_b32 v12, 0xffff0000, v9")
    a("v_mul_f32 v10, 0xbfb8aa3b, v12")
    a("v_exp_f32 v10, v10")
    a("v_lshlrev_b32 v8, 16, v9")
    a("v_add_f32 v10, 1.0, v10")
    a("v_rcp_f32 v10, v10")
    a("s_nop 0")
    a("v_mul_f32 v10, v12, v10")
    a("v_cvt_pk_bf16_f32 v10, v10, v10")
    a("v_lshlrev_b32 v10, 16, v10")
    a("v_mul_f32 v10, v8, v10")
    a("v_cvt_pk_bf16_f32 v10, v10, v10")
    a("v_lshlrev_b32 v10, 16, v10")
    a("v_add_f32 v10, v51, v10")
    a("v_cvt_pk_bf16_f32 v10, v10, v10")
    a("s_mov_b64 exec, s[46:47]")
    a("global_store_short v50, v10, s[20:21]")
    a("s_cmp_lg_u32 s2, 0")
    a("s_cbranch_scc1 L_PEND")
    a("s_mov_b64 exec, 1")
    a("v_mov_b32 v4, 0")
    a("v_mov_b32 v5, s51")
    a(f"global_store_dword v4, v5, s[24:25] offset:{WS_EPOCH}")
    a.label("L_PEND")
    stamp(7)
    a.label("L_CE")
    if ts:
        a.label("L_TSOUT")
        a("s_waitcnt lgkmcnt(0)")
        a("s_mov_b64 exec, 1")
        if dbg:
            a("s_branch L_end")
        a(f"s_mul_i32 s30, s2, {NW*NTS*8}")
        a(f"s_mul_i32 s31, s28, {NTS*8}")
        a("s_add_u32 s30, s30, s31")
        a("v_mov_b32 v2, s30")
        a(f"s_add_u32 s32, s24, {WS_TS}")
        a("s_addc_u32 s33, s25, 0")
        a("s_sleep 127")
        a("s_sleep 127")
        a("s_sleep 127")
        for j in range(NTS):
            a(f"v_mov_b32 v4, s{84+2*j}")
            a(f"v_mov_b32 v5, s{85+2*j}")
            a(f"global_store_dwordx2 v2, v[4:5], s[32:33] offset:{8*j}")
            a("s_nop 1")
    a.label("L_end")
    a("s_endpgm")
    open(fn, "w").write(wrap_single(a.text(), 256, NW * 64, LDS_TOTAL, 128))


if __name__ == "__main__":
    gen("k11.s")
    gen("k11_d32.s", D=32)
    gen("k11_p16.s", pre=16)
    gen("k11_sc1nt.s", ldflag="sc1 nt")
    gen("k11_q64.s", qstart=64, D=28)
    gen("k11_dbg.s", ts=True, dbg=True)
```
